```python
import torch

def _softmax(x, axis=-1):
    return torch.softmax(x, dim=axis)
def _gelu(x):
    return torch.nn.functional.gelu(x, approximate="tanh")
def _silu(x):
    return torch.nn.functional.silu(x)
def _sigmoid(x):
    return torch.sigmoid(x)
def _layernorm(x, axis=-1, eps=1e-5):
    m = x.mean(dim=axis, keepdim=True)
    v = x.var(dim=axis, keepdim=True, unbiased=False)
    return (x - m) / torch.sqrt(v + eps)
def _scatter_add(tgt, idx, src, axis=0):
    return tgt.clone().index_add_(axis, idx, src)
def _segment_sum(src, seg, n):
    out = torch.zeros((n,) + src.shape[1:], dtype=src.dtype)
    return out.index_add_(0, seg, src)
def _pad(x, pw):
    flat = tuple(v for pair in reversed(pw) for v in pair)
    return torch.nn.functional.pad(x, flat)

kernel_name = 'parallel_sum__mha_block_cached__dense_activation_gelu__decode'

def setup_inputs():

    _w = (lambda a: (lambda t: t.to(torch.bfloat16) if t.is_floating_point() else t)(torch.as_tensor(a)))
    def _A_setup():
        B, Sq, D = 8, 1, 512
        H, Sk, Dh = 32, 4096, 128
        return {
            "x": _w((lambda *s: torch.randn(*s, dtype=torch.bfloat16) * 0.05)(B, Sq, D)),
            "k_cache": _w((lambda *s: torch.randn(*s, dtype=torch.bfloat16) * 3.2)(B, H, Sk, Dh)),
            "v_cache": _w((lambda *s: torch.randn(*s, dtype=torch.bfloat16) * 0.8)(B, H, Sk, Dh)),
            "wq": _w((lambda *s: torch.randn(*s, dtype=torch.bfloat16) * 3.2)(D, H * Dh) * (D ** -0.5)),
            "wo": _w((lambda *s: torch.randn(*s, dtype=torch.bfloat16) * 0.8)(H * Dh, D) * ((H * Dh) ** -0.5)),
        }
    _A_in = _A_setup()

    def _B_setup():
        B, S, D, F = 8, 1, 512, 1792
        return {
            "x": _w((lambda *s: torch.randn(*s, dtype=torch.bfloat16) * 0.05)(B, S, D)),
            "w1": _w((lambda *s: torch.randn(*s, dtype=torch.bfloat16) * 3.2)(D, F) * (D ** -0.5)),
            "b1": _w((lambda *s: torch.randn(*s, dtype=torch.bfloat16) * 3.2)(F) * 0.01),
            "w2": _w((lambda *s: torch.randn(*s, dtype=torch.bfloat16) * 0.4)(F, D) * (F ** -0.5)),
            "b2": _w((lambda *s: torch.randn(*s, dtype=torch.bfloat16) * 0.4)(D) * 0.01),
        }
    _B_in = _B_setup()

    return {
        "A_x": _A_in["x"],
        "A_k_cache": _A_in["k_cache"],
        "A_v_cache": _A_in["v_cache"],
        "A_wq": _A_in["wq"],
        "A_wo": _A_in["wo"],
        "B_x": _B_in["x"],
        "B_w1": _B_in["w1"],
        "B_b1": _B_in["b1"],
        "B_w2": _B_in["w2"],
        "B_b2": _B_in["b2"],
    }

def reference(A_x, A_k_cache, A_v_cache, A_wq, A_wo, B_x, B_w1, B_b1, B_w2, B_b2):
    def _A_ref(x, k_cache, v_cache, wq, wo):
        B, Sq, D = x.shape
        H, Dh = 32, 128
        q = (lambda x, *d: x.permute(*d))((x @ wq).reshape(B, Sq, H, Dh), 0, 2, 1, 3)
        scores = torch.einsum("bhqd,bhkd->bhqk", q, k_cache) * (Dh ** -0.5)
        p = _softmax(scores, axis=-1)
        o = torch.einsum("bhqk,bhkd->bhqd", p, v_cache)
        return (lambda x, *d: x.permute(*d))(o, 0, 2, 1, 3).reshape(B, Sq, H * Dh) @ wo

    def _B_ref(x, w1, b1, w2, b2):
        h = torch.einsum("bsd,df->bsf", x, w1) + b1
        h = _gelu(h)
        return torch.einsum("bsf,fd->bsd", h, w2) + b2

    x = A_x
    xn = _layernorm(x, axis=-1)
    return x + _A_ref(xn, A_k_cache, A_v_cache, A_wq, A_wo) + _B_ref(xn, B_w1, B_b1, B_w2, B_b2)
```

```python
import re

TRANS = ("v_exp_f32", "v_log_f32", "v_rcp_f32", "v_rsq_f32", "v_sqrt_f32", "v_sin_f32", "v_cos_f32")

def regs_of(tok):
    tok = tok.strip()
    out = []
    m = re.fullmatch(r"-?\|?([vs])(\d+)\|?", tok)
    if m:
        return [(m.group(1), int(m.group(2)))]
    m = re.fullmatch(r"([vs])\[(\d+):(\d+)\]", tok)
    if m:
        return [(m.group(1), i) for i in range(int(m.group(2)), int(m.group(3)) + 1)]
    if tok == "vcc":
        return [("s", 106), ("s", 107)]
    if tok == "exec":
        return [("s", 126), ("s", 127)]
    return []

class Em:
    def __init__(self):
        self.lines = []
        self.pos = 0
        self.lastw = {}
        self.mfma_c_read = {}
        self.store_data = {}
        self.vm_issued = 0
        self.lgkm_issued = 0
        self.auto_nops = 0

    def raw(self, s):
        self.lines.append(s)

    def comment(self, s):
        self.lines.append("    ; " + s)

    def label(self, name):
        self.lines.append(name + ":")

    def fence(self, n=12):
        need = 0
        for r, (p, kind, op) in self.lastw.items():
            lim = {"mfma": 8, "valu": 5, "trans": 5, "dot": 5, "valu_sgpr": 5}.get(kind, 0)
            need = max(need, lim - (self.pos - p - 1))
        for r, p in self.mfma_c_read.items():
            need = max(need, 3 - (self.pos - p - 1))
        for r, p in self.store_data.items():
            need = max(need, 2 - (self.pos - p - 1))
        self.nop(need)

    def nop(self, n):
        while n > 0:
            k = min(n, 16)
            self.lines.append(f"    s_nop {k-1}")
            self.pos += k
            n -= k

    def I(self, text):
        t = text.strip()
        code = t.split(";")[0].strip()
        parts = code.split(None, 1)
        op = parts[0]
        rest = parts[1] if len(parts) > 1 else ""
        ops = []
        cur = ""
        depth = 0
        for ch in rest:
            if ch == "[": depth += 1
            if ch == "]": depth -= 1
            if ch == "," and depth == 0:
                ops.append(cur); cur = ""
            else:
                cur += ch
        if cur.strip(): ops.append(cur)
        toks = []
        for o in ops:
            o = o.strip()
            toks.append(o.split()[0] if o else o)
        is_dpp = "_dpp" in op
        kind = None
        dst = []; src = []
        srcC = []
        if op.startswith("v_mfma"):
            kind = "mfma"
            dst = regs_of(toks[0]); src = regs_of(toks[1]) + regs_of(toks[2]); srcC = regs_of(toks[3])
        elif op.startswith("v_cmp"):
            kind = "valu"; dst = regs_of(toks[0]); src = sum((regs_of(x) for x in toks[1:]), [])
        elif op.startswith("v_readfirstlane") or op.startswith("v_readlane"):
            kind = "readlane"; dst = regs_of(toks[0]); src = sum((regs_of(x) for x in toks[1:]), [])
        elif op.startswith("v_permlane"):
            kind = "permlane"; dst = regs_of(toks[0]) + regs_of(toks[1]); src = list(dst)
        elif op.startswith("v_"):
            base = op.replace("_dpp", "").replace("_e32", "").replace("_e64", "")
            kind = "trans" if base in TRANS else ("dot" if base.startswith("v_dot") else "valu")
            dst = regs_of(toks[0]); src = sum((regs_of(x) for x in toks[1:]), [])
            if base.startswith("v_fmac") or base.startswith("v_dot2c") or is_dpp:
                src = src + dst
            if base.startswith("v_add_co") or base.startswith("v_addc_co"):
                dst = dst + regs_of(toks[1])
        elif op.startswith("buffer_load") or op.startswith("global_load"):
            kind = "vmem_load"; dst = regs_of(toks[0]); src = sum((regs_of(x) for x in toks[1:]), [])
        elif op.startswith("global_atomic") or op.startswith("buffer_atomic"):
            kind = "vmem_load"
            if "sc0" in code and op.startswith("global_atomic"):
                dst = regs_of(toks[0]); src = sum((regs_of(x) for x in toks[1:]), [])
            else:
                src = sum((regs_of(x) for x in toks), [])
        elif op.startswith("buffer_store") or op.startswith("global_store"):
            kind = "vmem_store"; src = sum((regs_of(x) for x in toks), [])
        elif op.startswith("ds_read") or op.startswith("ds_bpermute") or op.startswith("ds_swizzle") or "_rtn" in op:
            kind = "ds_load"; dst = regs_of(toks[0]); src = sum((regs_of(x) for x in toks[1:]), [])
        elif op.startswith("ds_write") or op.startswith("ds_add"):
            kind = "ds_store"; src = sum((regs_of(x) for x in toks), [])
        elif op.startswith("s_load") or op.startswith("s_memtime") or op.startswith("s_memrealtime"):
            kind = "smem"; dst = regs_of(toks[0]); src = sum((regs_of(x) for x in toks[1:]), [])
        elif op.startswith("s_nop"):
            n = int(toks[0]) + 1
            self.lines.append("    " + t); self.pos += n
            return
        elif op.startswith("s_"):
            kind = "salu"
            if op.startswith("s_cmp") or op.startswith("s_cbranch") or op.startswith("s_branch") or op in ("s_barrier", "s_waitcnt", "s_endpgm", "s_sleep", "s_setprio"):
                src = sum((regs_of(x) for x in toks), [])
            else:
                dst = regs_of(toks[0]); src = sum((regs_of(x) for x in toks[1:]), [])
        elif op.startswith("buffer_wbl2") or op.startswith("buffer_inv"):
            kind = "vmem_store"
        else:
            raise ValueError("unknown op " + op)

        need = 0
        def dist(p): return self.pos - p - 1
        isvalu = kind in ("valu", "trans", "dot", "readlane", "permlane", "mfma")
        for r in src + srcC:
            if r not in self.lastw: continue
            p, k, pop = self.lastw[r]
            req = 0
            if r[0] == "v":
                if k == "mfma":
                    if kind == "mfma" and r in srcC and r not in src:
                        req = 0
                    else:
                        req = 8
                elif k in ("valu", "trans", "dot"):
                    if kind == "mfma": req = max(req, 2)
                    if is_dpp: req = max(req, 2)
                    if kind == "permlane": req = max(req, 2)
                    if kind == "readlane": req = max(req, 1)
                    if k == "trans" and kind != "trans" and isvalu: req = max(req, 1)
                    if k == "trans" and not isvalu: req = max(req, 1)
                    if k == "dot":
                        if kind == "dot" and pop == op:
                            if toks[-1].strip() == f"v{r[1]}" and r not in regs_of(toks[1]) + regs_of(toks[2]):
                                req = max(req, 0)
                            else:
                                req = max(req, 3)
                        else:
                            req = max(req, 3)
            else:
                if k == "valu_sgpr":
                    if isvalu: req = max(req, 4 if kind == "readlane" else 2)
                    if kind in ("vmem_load", "vmem_store"): req = max(req, 5)
                    if kind in ("salu", "smem"): req = max(req, 1)
            need = max(need, req - dist(p))
        for r in dst:
            if r[0] == "v":
                if r in self.lastw:
                    p, k, pop = self.lastw[r]
                    if k == "mfma" and not (kind == "mfma"):
                        need = max(need, 8 - dist(p))
                    if k == "dot" and not (kind == "dot" and pop == op):
                        need = max(need, 3 - dist(p))
                if r in self.mfma_c_read and kind != "mfma":
                    need = max(need, 3 - dist(self.mfma_c_read[r]))
                if r in self.store_data:
                    need = max(need, 2 - dist(self.store_data[r]))
        if need > 0:
            self.auto_nops += need
            self.nop(need)
        self.lines.append("    " + t)
        for r in dst:
            if r[0] == "v":
                if kind in ("vmem_load", "ds_load"):
                    self.lastw.pop(r, None)
                else:
                    self.lastw[r] = (self.pos, "valu" if kind in ("permlane",) else kind, op)
            else:
                if kind in ("valu", "readlane"):
                    self.lastw[r] = (self.pos, "valu_sgpr", op)
                else:
                    self.lastw.pop(r, None)
        if kind == "mfma":
            for r in srcC: self.mfma_c_read[r] = self.pos
        if kind == "vmem_store" and ("x4" in op or "x3" in op):
            for r in regs_of(toks[0]) + (regs_of(toks[1]) if op.startswith("global") else []):
                self.store_data[r] = self.pos
        self.pos += 1
        if kind in ("vmem_load", "vmem_store"):
            self.vm_issued += 1
            return self.vm_issued
        if kind in ("ds_load", "ds_store"):
            self.lgkm_issued += 1
            return self.lgkm_issued
        return None

    def wait_vm(self, ticket):
        n = self.vm_issued - ticket
        assert n >= 0
        if n > 63: n = 63
        self.I(f"s_waitcnt vmcnt({n})")

    def wait_lgkm(self, ticket=None):
        if ticket is None:
            self.I("s_waitcnt lgkmcnt(0)")
        else:
            n = min(self.lgkm_issued - ticket, 15)
            self.I(f"s_waitcnt lgkmcnt({n})")

    def text(self):
        return "\n".join(self.lines) + "\n"
```

```python
import sys, json
from asmgen import Em

NAME = "parallel_sum__mha_block_cached__dense_activation_gelu__decode_kernel"
REF = "parallel_sum__mha_block_cached__dense_activation_gelu__decode.s.ref"

QP   = 0
QW   = 8192
HP   = 12288
ML   = 20480
OP   = 20992
OUTP = 29184
FLAG = 37376
LDS_BYTES = 37888

def bitrev4(j):
    return ((j & 1) << 3) | ((j & 2) << 1) | ((j & 4) >> 1) | ((j & 8) >> 3)

def gen(mimic=True, depth=16, kvflags="nt", wflags="", w2pos=32, stamps=False):
    e = Em()
    I = e.I
    RING = 128 - 4 * depth
    def slot(n): return RING + 4 * (n % depth)
    def vr(a, n=4): return f"v[{a}:{a+n-1}]"

    def allreduce(op, v, t):
        I(f"{op}_dpp v{v}, v{v}, v{v} quad_perm:[1,0,3,2] row_mask:0xf bank_mask:0xf")
        I(f"{op}_dpp v{v}, v{v}, v{v} quad_perm:[2,3,0,1] row_mask:0xf bank_mask:0xf")
        I(f"{op}_dpp v{v}, v{v}, v{v} row_half_mirror row_mask:0xf bank_mask:0xf")
        I(f"{op}_dpp v{v}, v{v}, v{v} row_mirror row_mask:0xf bank_mask:0xf")
        I(f"v_mov_b32 v{t}, v{v}")
        I(f"v_permlane16_swap_b32 v{v}, v{t}")
        I(f"{op} v{v}, v{v}, v{t}")
        I(f"v_mov_b32 v{t}, v{v}")
        I(f"v_permlane32_swap_b32 v{v}, v{t}")
        I(f"{op} v{v}, v{v}, v{t}")
    def rowreduce(op, v):
        I(f"{op}_dpp v{v}, v{v}, v{v} quad_perm:[1,0,3,2] row_mask:0xf bank_mask:0xf")
        I(f"{op}_dpp v{v}, v{v}, v{v} quad_perm:[2,3,0,1] row_mask:0xf bank_mask:0xf")
        I(f"{op}_dpp v{v}, v{v}, v{v} row_half_mirror row_mask:0xf bank_mask:0xf")
        I(f"{op}_dpp v{v}, v{v}, v{v} row_mirror row_mask:0xf bank_mask:0xf")
    def bf16r(v):
        I(f"v_cvt_pk_bf16_f32 v{v}, v{v}, v{v}")
        I(f"v_and_b32 v{v}, 0xffff0000, v{v}")
    bsel = [0]
    def buildB(src, lane):
        b = 20 + 4 * bsel[0]
        bsel[0] ^= 1
        for r in range(4):
            I(f"v_and_b32_dpp v{b+r}, v{src}, v{8+r} row_newbcast:{lane} row_mask:0xf bank_mask:0xf")
        return b
    def lds_store_acc(acc, base):
        I("s_mov_b64 exec, s[96:97]")
        for r in range(4):
            I(f"ds_write_b32 v7, v{acc+r} offset:{base + r*32}")
        I("s_mov_b64 exec, -1")
    nstamp = [0]
    def stamp():
        if not stamps: return
        k = nstamp[0]; nstamp[0] += 1
        I(f"s_memrealtime s[{98}:{99}]")
        I("s_waitcnt lgkmcnt(0)")
        I(f"v_writelane_b32 v63, s98, {k}")

    I("s_cmp_ge_u32 s2, 256")
    I("s_cbranch_scc1 L_done")
    I("s_load_dwordx16 s[16:31], s[0:1], 0")
    I("s_load_dwordx8 s[32:39], s[0:1], 64")
    I("s_load_dwordx2 s[40:41], s[0:1], 96")
    if stamps:
        I("v_mov_b32 v63, 0")
    I("v_lshrrev_b32 v1, 6, v0")
    I("v_and_b32 v0, 63, v0")
    I("v_readfirstlane_b32 s3, v1")
    I("v_lshlrev_b32 v1, 4, v0")
    I("v_and_b32 v2, 15, v0")
    I("v_lshrrev_b32 v3, 4, v0")
    I("s_lshr_b32 s4, s2, 5")
    I("s_and_b32 s5, s2, 31")
    I("s_and_b32 s8, s3, 3")
    I("s_lshr_b32 s9, s3, 2")
    I("s_lshl_b32 s6, s2, 20")
    I("s_lshl_b32 s7, s3, 12")
    I("s_add_u32 s6, s6, s7")
    I("v_lshlrev_b32 v60, 4, v2")
    I("v_lshl_add_u32 v4, v3, 13, v60")
    I("v_lshl_add_u32 v6, v3, 10, v60")
    I("v_min_u32 v61, 6, v2")
    I("v_lshlrev_b32 v61, 4, v61")
    I("s_movk_i32 s7, 3584")
    I("v_mad_u32_u24 v5, v3, s7, v61")
    I("v_and_b32 v61, 7, v2")
    I("v_lshl_add_u32 v61, v61, 2, v3")
    I("s_lshl_b32 s7, s3, 5")
    I("v_add_u32 v61, s7, v61")
    I("v_lshlrev_b32 v61, 1, v61")
    I("v_and_b32 v62, 7, v0")
    I("v_lshl_add_u32 v62, v62, 2, s7")
    I("v_lshlrev_b32 v62, 1, v62")
    I("v_and_b32 v59, 3, v2")
    I("v_lshl_add_u32 v59, v59, 2, v3")
    I("s_lshl_b32 s7, s9, 4")
    I("v_add_u32 v59, s7, v59")
    I("v_min_u32 v58, 55, v59")
    I("s_mul_i32 s7, s5, 56")
    I("v_add_u32 v58, s7, v58")
    I("v_lshlrev_b32 v58, 1, v58")
    I("v_lshl_add_u32 v7, v3, 5, v2")
    I("v_lshlrev_b32 v7, 2, v7")
    I("s_lshl_b32 s7, s3, 9")
    I("v_add_u32 v7, s7, v7")
    I("v_mov_b32 v50, 0xffff")
    I("v_mov_b32 v51, 0xffff0000")
    for r in range(4):
        I(f"v_cmp_eq_u32 vcc, {2*r}, v2")
        I(f"v_cndmask_b32 v{8+r}, 0, v50, vcc")
        I(f"v_cmp_eq_u32 vcc, {2*r+1}, v2")
        I(f"v_cndmask_b32 v{8+r}, v{8+r}, v51, vcc")
    I("s_mov_b32 s92, 0xcccccccc"); I("s_mov_b32 s93, 0xcccccccc")
    I("s_mov_b32 s94, 0xaaaaaaaa"); I("s_mov_b32 s95, 0xaaaaaaaa")
    I("s_mov_b32 s96, 0x00ff00ff"); I("s_mov_b32 s97, 0x00ff00ff")
    I("s_waitcnt lgkmcnt(0)")
    I("s_lshl_b32 s7, s4, 10")
    I("s_add_u32 s16, s16, s7")
    I("s_addc_u32 s17, s17, 0")
    t_x = I("global_load_dwordx4 v[36:39], v1, s[16:17]")
    t_xc = I("global_load_ushort v56, v61, s[16:17]")
    def srd(d, p, size):
        I(f"s_mov_b32 s{d}, s{p}"); I(f"s_mov_b32 s{d+1}, s{p+1}"); I(f"s_mov_b32 s{d+2}, {size}"); I(f"s_mov_b32 s{d+3}, 0x20000")
    srd(52, 22, 512*4096*2)
    srd(44, 18, 1 << 28)
    stream = [("wq", s) for s in range(8)] + [("K", k) for k in range(64)] + [("w1", s) for s in range(8)]
    vs = [("V", k) for k in range(64)]
    stream += vs[:w2pos] + [("w2", t) for t in range(4)] + vs[w2pos:] + [("wo", t) for t in range(8)]
    tickets = {}
    sreg = [76]
    cur_kv = {}
    I("s_lshl_b32 s10, s3, 18")
    I("s_lshl_b32 s7, s5, 8")
    I("s_add_u32 s10, s10, s7")
    nissued = [0]
    def issue_next():
        n = nissued[0]
        if n >= len(stream): return
        nissued[0] += 1
        kind, idx = stream[n]
        d = vr(slot(n))
        def news():
            sreg[0] = 76 + (sreg[0] - 76 + 1) % 16
            return sreg[0]
        if kind in ("K", "V"):
            T, sub = idx >> 2, idx & 3
            if sub == 0 or cur_kv.get("k") != (kind, T):
                s = news(); cur_kv["k"] = (kind, T); cur_kv["s"] = s
                I(f"s_add_u32 s{s}, s6, {T*65536}")
            s = cur_kv["s"]
            sr = "s[44:47]" if kind == "K" else "s[48:51]"
            tickets[n] = I(f"buffer_load_dwordx4 {d}, v1, {sr}, s{s} offen offset:{sub*1024} {kvflags}")
        elif kind == "wq":
            s = news(); I(f"s_add_u32 s{s}, s10, {idx*4*8192}")
            tickets[n] = I(f"buffer_load_dwordx4 {d}, v4, s[52:55], s{s} offen {wflags}")
        elif kind == "w1":
            s = news(); I(f"s_add_u32 s{s}, s11, {idx*4*3584}")
            tickets[n] = I(f"buffer_load_dwordx4 {d}, v5, s[60:63], s{s} offen {wflags}")
        elif kind == "w2":
            s = news(); I(f"s_add_u32 s{s}, s12, {idx*4096}")
            tickets[n] = I(f"buffer_load_dwordx4 {d}, v6, s[64:67], s{s} offen {wflags}")
        elif kind == "wo":
            s = news(); I(f"s_add_u32 s{s}, s13, {idx*4096}")
            tickets[n] = I(f"buffer_load_dwordx4 {d}, v6, s[56:59], s{s} offen {wflags}")
    for _ in range(depth): issue_next()
    t_b1 = I("global_load_ushort v57, v58, s[30:31]")
    t_xf = I("global_load_dwordx2 v[52:53], v62, s[16:17]")
    t_b2 = I("global_load_dwordx2 v[54:55], v62, s[34:35]")
    srd(48, 20, 1 << 28)
    srd(56, 24, 4096*512*2)
    srd(60, 28, 512*1792*2)
    srd(64, 32, 1792*512*2)
    srd(68, 40, 1 << 20)
    srd(72, 36, 8192)
    I("s_mul_i32 s11, s3, 114688")
    I("s_mul_i32 s7, s5, 112")
    I("s_add_u32 s11, s11, s7")
    I("s_mul_i32 s12, s5, 56")
    I("s_lshl_b32 s7, s9, 4")
    I("s_add_u32 s12, s12, s7")
    I("s_lshl_b32 s12, s12, 10")
    I("s_lshl_b32 s7, s8, 8")
    I("s_add_u32 s12, s12, s7")
    I("s_lshl_b32 s13, s5, 7")
    I("s_lshl_b32 s14, s9, 5")
    I("s_add_u32 s13, s13, s14")
    I("s_lshl_b32 s13, s13, 10")
    I("s_add_u32 s13, s13, s7")
    stamp()
    e.wait_vm(t_x)
    for j in range(4):
        I(f"v_lshlrev_b32 v{40+2*j}, 16, v{36+j}")
        I(f"v_and_b32 v{41+2*j}, 0xffff0000, v{36+j}")
    I("v_add_f32 v48, v40, v41"); I("v_add_f32 v49, v42, v43"); I("v_add_f32 v50, v44, v45"); I("v_add_f32 v51, v46, v47")
    I("v_add_f32 v48, v48, v49"); I("v_add_f32 v50, v50, v51"); I("v_add_f32 v48, v48, v50")
    allreduce("v_add_f32", 48, 49)
    I("v_mul_f32 v48, 0x3b000000, v48")
    for j in range(8):
        I(f"v_sub_f32 v{40+j}, v{40+j}, v48")
    I("v_mul_f32 v50, v40, v40")
    I("v_mul_f32 v51, v41, v41")
    for j in range(2, 8, 2):
        I(f"v_fmac_f32 v50, v{40+j}, v{40+j}")
        I(f"v_fmac_f32 v51, v{41+j}, v{41+j}")
    I("v_add_f32 v50, v50, v51")
    allreduce("v_add_f32", 50, 49)
    I("v_mul_f32 v50, 0x3b000000, v50")
    if mimic:
        bf16r(50)
        I("v_add_f32 v50, 0x3727c5ac, v50")
        bf16r(50)
        I("v_sqrt_f32 v50, v50")
        bf16r(50)
        I("v_rcp_f32 v50, v50")
        bf16r(48)
    else:
        I("v_add_f32 v50, 0x3727c5ac, v50")
        I("v_rsq_f32 v50, v50")
    e.wait_vm(t_xc)
    I("v_lshlrev_b32 v56, 16, v56")
    I("v_sub_f32 v56, v56, v48")
    if mimic: bf16r(56)
    I("v_mul_f32 v56, v56, v50")
    I("v_cvt_pk_bf16_f32 v58, v56, v56")
    stamp()
    ncons = 0
    for s in range(8):
        b = buildB(58, s)
        e.wait_vm(tickets[ncons])
        c = "0" if s == 0 else "v[28:31]"
        I(f"v_mfma_f32_16x16x32_bf16 v[28:31], {vr(slot(ncons))}, {vr(b)}, {c}")
        ncons += 1
        issue_next()
    lds_store_acc(28, QP)
    I("v_lshlrev_b32 v60, 5, v2")
    I("v_lshl_add_u32 v60, v3, 3, v60")
    I("v_lshlrev_b32 v61, 4, v2")
    I("s_lshl_b32 s7, s3, 8")
    I("v_add_u32 v61, s7, v61")
    I("v_lshl_add_u32 v62, v3, 2, v61")
    I("s_waitcnt lgkmcnt(0)")
    I("s_barrier")
    stamp()
    tk = []
    for j in range(16):
        tk.append(I(f"ds_read_b64 v[{20+2*j}:{21+2*j}], v60 offset:{QP + j*512}"))
    for j in range(0, 16, 2):
        e.wait_lgkm(tk[j+1])
        I(f"v_pk_add_f32 v[{20+2*j}:{21+2*j}], v[{20+2*j}:{21+2*j}], v[{22+2*j}:{23+2*j}]")
    for st in (4, 8, 16):
        for j in range(0, 16, st):
            I(f"v_pk_add_f32 v[{20+2*j}:{21+2*j}], v[{20+2*j}:{21+2*j}], v[{20+2*j+st}:{21+2*j+st}]")
    I("v_cvt_pk_bf16_f32 v22, v20, v21")
    I(f"ds_write_b32 v62, v22 offset:{QW}")
    I("s_waitcnt lgkmcnt(0)")
    I(f"ds_read_b128 v[12:15], v61 offset:{QW}")
    I("s_waitcnt lgkmcnt(0)")
    stamp()
    P = 36
    for k in range(64):
        u, j = k >> 4, k & 15
        e.wait_vm(tickets[ncons])
        sl = slot(ncons)
        I(f"v_dot2_f32_bf16 v{P+j}, v{sl}, v12, 0")
        for r in range(1, 4):
            I(f"v_dot2_f32_bf16 v{P+j}, v{sl+r}, v{12+r}, v{P+j}")
        ncons += 1
        issue_next()
        def stepA(a):
            I(f"v_add_f32_dpp v{P+a}, v{P+a}, v{P+a} row_ror:8 row_mask:0xf bank_mask:0x3")
            I(f"v_add_f32_dpp v{P+a}, v{P+a+1}, v{P+a+1} row_ror:8 row_mask:0xf bank_mask:0xc")
        def stepB(a):
            I(f"v_add_f32_dpp v{P+a}, v{P+a}, v{P+a} row_half_mirror row_mask:0xf bank_mask:0x5")
            I(f"v_add_f32_dpp v{P+a}, v{P+a+2}, v{P+a+2} row_half_mirror row_mask:0xf bank_mask:0xa")
        def stepC(a):
            I(f"v_add_f32_dpp v{P+a}, v{P+a}, v{P+a} quad_perm:[2,3,0,1] row_mask:0xf bank_mask:0xf")
            I(f"v_add_f32_dpp v{P+a+4}, v{P+a+4}, v{P+a+4} quad_perm:[2,3,0,1] row_mask:0xf bank_mask:0xf")
            I(f"v_cndmask_b32 v{P+a}, v{P+a}, v{P+a+4}, s[92:93]")
        def stepD(u):
            I(f"v_add_f32_dpp v{P}, v{P}, v{P} quad_perm:[1,0,3,2] row_mask:0xf bank_mask:0xf")
            I(f"v_add_f32_dpp v{P+8}, v{P+8}, v{P+8} quad_perm:[1,0,3,2] row_mask:0xf bank_mask:0xf")
            I(f"v_cndmask_b32 v{16+u}, v{P}, v{P+8}, s[94:95]")
        if j >= 2 and j % 2 == 0: stepA(j - 2)
        if j >= 5 and j % 4 == 1: stepB(j - 5)
        if j == 11: stepC(0)
        if j == 15:
            stepA(14); stepB(12); stepC(8); stepD(u)
    stamp()
    if mimic:
        for a in (16, 18):
            I(f"v_cvt_pk_bf16_f32 v36, v{a}, v{a+1}")
            I(f"v_lshlrev_b32 v{a}, 16, v36")
            I(f"v_and_b32 v{a+1}, 0xffff0000, v36")
    for a in range(16, 20):
        I(f"v_mul_f32 v{a}, 0x3db504f3, v{a}")
    if mimic:
        for a in (16, 18):
            I(f"v_cvt_pk_bf16_f32 v36, v{a}, v{a+1}")
            I(f"v_lshlrev_b32 v{a}, 16, v36")
            I(f"v_and_b32 v{a+1}, 0xffff0000, v36")
    I("v_max3_f32 v36, v16, v17, v18")
    I("v_max_f32 v36, v36, v19")
    allreduce("v_max_f32", 36, 37)
    for a in range(4):
        I(f"v_sub_f32 v{38+a}, v{16+a}, v36")
        I(f"v_mul_f32 v{38+a}, 0x3fb8aa3b, v{38+a}")
        I(f"v_exp_f32 v{38+a}, v{38+a}")
    I("v_add_f32 v38, v38, v39"); I("v_add_f32 v40, v40, v41"); I("v_add_f32 v37, v38, v40")
    allreduce("v_add_f32", 37, 38)
    I("s_lshl_b32 s7, s3, 3")
    I("v_mov_b32 v38, s7")
    I("s_mov_b64 exec, 1")
    I(f"ds_write_b64 v38, v[36:37] offset:{ML}")
    I("s_mov_b64 exec, -1")
    for s in range(8):
        b = buildB(58, s)
        e.wait_vm(tickets[ncons])
        c = "0" if s == 0 else "v[32:35]"
        I(f"v_mfma_f32_16x16x32_bf16 v[32:35], {vr(slot(ncons))}, {vr(b)}, {c}")
        ncons += 1
        issue_next()
    lds_store_acc(32, HP)
    I("v_lshlrev_b32 v60, 3, v2")
    I("v_lshrrev_b32 v61, 2, v2")
    I("v_lshlrev_b32 v61, 11, v61")
    I("v_lshl_add_u32 v61, v59, 2, v61")
    I("s_waitcnt lgkmcnt(0)")
    I("s_barrier")
    stamp()
    t_ml = I(f"ds_read_b64 v[36:37], v60 offset:{ML}")
    th = [I(f"ds_read_b32 v{44+jj}, v61 offset:{HP + jj*512}") for jj in range(4)]
    e.wait_lgkm(t_ml)
    I("v_mov_b32 v38, v36")
    rowreduce("v_max_f32", 38)
    I("v_sub_f32 v36, v36, v38")
    I("v_mul_f32 v36, 0x3fb8aa3b, v36")
    I("v_exp_f32 v36, v36")
    I("v_mul_f32 v37, v37, v36")
    rowreduce("v_add_f32", 37)
    I("v_rcp_f32 v37, v37")
    for a in range(4):
        I(f"v_sub_f32 v{16+a}, v{16+a}, v38")
        I(f"v_mul_f32 v{16+a}, 0x3fb8aa3b, v{16+a}")
        I(f"v_exp_f32 v{16+a}, v{16+a}")
    for a in range(4):
        I(f"v_mul_f32 v{16+a}, v{16+a}, v37")
        I(f"v_cvt_pk_bf16_f32 v{16+a}, v{16+a}, v{16+a}")
    e.wait_lgkm(th[3])
    I("v_add_f32 v44, v44, v45"); I("v_add_f32 v46, v46, v47"); I("v_add_f32 v44, v44, v46")
    I("v_add_f32_dpp v44, v44, v44 row_ror:4 row_mask:0xf bank_mask:0xf")
    I("v_add_f32_dpp v44, v44, v44 row_ror:8 row_mask:0xf bank_mask:0xf")
    if mimic: bf16r(44)
    I("v_lshlrev_b32 v57, 16, v57")
    I("v_add_f32 v44, v44, v57")
    if mimic: bf16r(44)
    I("v_mul_f32 v45, v44, v44")
    I("v_mul_f32 v45, 0x3d372713, v45")
    I("v_add_f32 v45, 1.0, v45")
    I("v_mul_f32 v45, v45, v44")
    I("v_mul_f32 v45, 0xc0135761, v45")
    I("v_exp_f32 v45, v45")
    I("v_add_f32 v45, 1.0, v45")
    I("v_rcp_f32 v45, v45")
    I("v_mul_f32 v45, v45, v44")
    I("v_cvt_pk_bf16_f32 v45, v45, v45")
    I("v_cmp_gt_u32 vcc, 56, v59")
    I("v_cndmask_b32 v59, 0, v45, vcc")
    stamp()
    first_pv = True; first_out = True
    pend = None
    todo = [stream[n] for n in range(ncons, len(stream)) if stream[n][0] != "wo"]
    def bfor(item):
        kind, idx = item
        if kind == "V": return buildB(16 + (idx >> 4), bitrev4(idx & 15))
        return buildB(59, idx)
    nb = bfor(todo[0])
    for n, item in enumerate(todo):
        b = nb
        if n + 1 < len(todo): nb = bfor(todo[n + 1])
        e.wait_vm(tickets[ncons])
        if item[0] == "V":
            c = "0" if first_pv else "v[28:31]"; first_pv = False
            I(f"v_mfma_f32_16x16x32_bf16 v[28:31], {vr(slot(ncons))}, {vr(b)}, {c}")
        else:
            c = "0" if first_out else "v[32:35]"; first_out = False
            I(f"v_mfma_f32_16x16x32_bf16 v[32:35], {vr(slot(ncons))}, {vr(b)}, {c}")
        ncons += 1
        issue_next()
    stamp()
    I("v_and_b32 v60, 7, v2")
    I("v_lshl_add_u32 v60, v60, 2, v3")
    I("s_lshl_b32 s7, s9, 5")
    I("v_add_u32 v60, s7, v60")
    I("v_lshlrev_b32 v60, 2, v60")
    I("v_lshrrev_b32 v61, 3, v2")
    I("v_lshl_add_u32 v60, v61, 12, v60")
    lds_store_acc(28, OP)
    I("s_waitcnt lgkmcnt(0)")
    I("s_barrier")
    to = [I(f"ds_read_b32 v{36+jj}, v60 offset:{OP + jj*512}") for jj in range(8)]
    e.wait_lgkm(to[3])
    I("v_add_f32 v36, v36, v37"); I("v_add_f32 v38, v38, v39"); I("v_add_f32 v36, v36, v38")
    e.wait_lgkm(to[7])
    I("v_add_f32 v40, v40, v41"); I("v_add_f32 v42, v42, v43"); I("v_add_f32 v40, v40, v42")
    I("v_add_f32 v36, v36, v40")
    I("v_add_f32_dpp v36, v36, v36 row_ror:8 row_mask:0xf bank_mask:0xf")
    I("v_cvt_pk_bf16_f32 v36, v36, v36")
    nb = buildB(36, 0)
    for t in range(8):
        b = nb
        if t < 7: nb = buildB(36, t + 1)
        e.wait_vm(tickets[ncons])
        I(f"v_mfma_f32_16x16x32_bf16 v[32:35], {vr(slot(ncons))}, {vr(b)}, v[32:35]")
        ncons += 1
    lds_store_acc(32, OUTP)
    I("s_waitcnt lgkmcnt(0)")
    I("s_barrier")
    stamp()
    I("s_cmp_lg_u32 s3, 0")
    I("s_cbranch_scc1 L_wait")
    tr = []
    for half in range(2):
        for rq in range(4):
            tr.append(I(f"ds_read_b128 {vr(64 + 4*(4*half+rq))}, v1 offset:{OUTP + rq*2048 + half*1024}"))
    I("s_lshl_b32 s7, s2, 11")
    for half in range(2):
        e.wait_lgkm(tr[4*half+3])
        a = 64 + 16*half
        for rr in (0, 2):
            I(f"v_pk_add_f32 v[{a+rr}:{a+rr+1}], v[{a+rr}:{a+rr+1}], v[{a+4+rr}:{a+5+rr}]")
            I(f"v_pk_add_f32 v[{a+8+rr}:{a+9+rr}], v[{a+8+rr}:{a+9+rr}], v[{a+12+rr}:{a+13+rr}]")
        for rr in (0, 2):
            I(f"v_pk_add_f32 v[{a+rr}:{a+rr+1}], v[{a+rr}:{a+rr+1}], v[{a+8+rr}:{a+9+rr}]")
        I(f"buffer_store_dwordx4 {vr(a)}, v1, s[68:71], s7 offen offset:{half*1024} sc1")
    I("s_lshl_b32 s7, s4, 2")
    I("v_mov_b32 v60, s7")
    I("v_mov_b32 v61, 1")
    I("v_mov_b32 v36, 0")
    I("s_waitcnt vmcnt(0)")
    I("s_mov_b64 exec, 1")
    I("global_atomic_add v62, v60, v61, s[38:39] sc0")
    I("s_waitcnt vmcnt(0)")
    I(f"ds_write_b32 v36, v62 offset:{FLAG}")
    I("s_mov_b64 exec, -1")
    I("s_waitcnt lgkmcnt(0)")
    e.fence()
    e.label("L_wait")
    I("s_barrier")
    I("v_mov_b32 v36, 0")
    I(f"ds_read_b32 v36, v36 offset:{FLAG}")
    I("v_lshrrev_b32 v60, 3, v0")
    I("v_lshlrev_b32 v60, 11, v60")
    I("v_and_b32 v61, 7, v0")
    I("v_lshl_add_u32 v60, v61, 4, v60")
    I("s_lshl_b32 s7, s4, 16")
    I("s_lshl_b32 s14, s3, 7")
    I("s_add_u32 s7, s7, s14")
    I("s_add_u32 s76, s7, 16384")
    I("s_add_u32 s77, s7, 32768")
    I("s_add_u32 s78, s7, 49152")
    I("s_waitcnt lgkmcnt(0)")
    I("v_readfirstlane_b32 s14, v36")
    stamp()
    I("s_cmp_lg_u32 s14, 31")
    I("s_cbranch_scc1 L_end")
    for st, s in enumerate(("s7", "s76", "s77", "s78")):
        I(f"buffer_load_dwordx4 {vr(64+4*st)}, v60, s[68:71], {s} offen sc1")
    for j in range(2):
        I(f"v_lshlrev_b32 v{40+2*j}, 16, v{52+j}")
        I(f"v_and_b32 v{41+2*j}, 0xffff0000, v{52+j}")
        I(f"v_lshlrev_b32 v{44+2*j}, 16, v{54+j}")
        I(f"v_and_b32 v{45+2*j}, 0xffff0000, v{54+j}")
    for j in range(4):
        I(f"v_add_f32 v{40+j}, v{40+j}, v{44+j}")
    I("v_lshlrev_b32 v61, 3, v61")
    I("s_lshl_b32 s7, s4, 10")
    I("s_lshl_b32 s14, s3, 6")
    I("s_add_u32 s7, s7, s14")
    I("s_waitcnt vmcnt(2)")
    for rr in (0, 2):
        I(f"v_pk_add_f32 v[{64+rr}:{65+rr}], v[{64+rr}:{65+rr}], v[{68+rr}:{69+rr}]")
    I("s_waitcnt vmcnt(0)")
    for rr in (0, 2):
        I(f"v_pk_add_f32 v[{72+rr}:{73+rr}], v[{72+rr}:{73+rr}], v[{76+rr}:{77+rr}]")
    for rr in (0, 2):
        I(f"v_pk_add_f32 v[{64+rr}:{65+rr}], v[{64+rr}:{65+rr}], v[{72+rr}:{73+rr}]")
    for j in range(4):
        I(f"v_add_f32_dpp v{64+j}, v{64+j}, v{64+j} row_ror:8 row_mask:0xf bank_mask:0xf")
    for j in range(4):
        I(f"v_mov_b32 v{68+j}, v{64+j}")
    for j in range(4):
        I(f"v_permlane16_swap_b32 v{64+j}, v{68+j}")
    for j in range(4):
        I(f"v_add_f32 v{64+j}, v{64+j}, v{68+j}")
    for j in range(4):
        I(f"v_mov_b32 v{68+j}, v{64+j}")
    for j in range(4):
        I(f"v_permlane32_swap_b32 v{64+j}, v{68+j}")
    for j in range(4):
        I(f"v_add_f32 v{64+j}, v{64+j}, v{68+j}")
    for j in range(4):
        I(f"v_add_f32 v{64+j}, v{64+j}, v{40+j}")
    I("v_cvt_pk_bf16_f32 v64, v64, v65")
    I("v_cvt_pk_bf16_f32 v65, v66, v67")
    I("s_mov_b64 exec, 0xff")
    I("buffer_store_dwordx2 v[64:65], v61, s[72:75], s7 offen")
    I("s_mov_b64 exec, -1")
    e.fence()
    e.label("L_end")
    if stamps:
        stamp()
        I("s_mov_b32 s70, 0x1000000")
        I("s_lshl_b32 s7, s2, 4")
        I("s_add_u32 s7, s7, s3")
        I("s_lshl_b32 s7, s7, 8")
        I("s_add_u32 s7, s7, 0x100000")
        I("v_lshlrev_b32 v60, 2, v0")
        I("buffer_store_dword v63, v60, s[68:71], s7 offen")
    e.label("L_done")

    ref = open(REF).read()
    head = []
    for line in ref.splitlines():
        if line.startswith("; @launch"):
            head.append(f"; @launch grid=(256,1,1) block=(1024,1,1) lds={LDS_BYTES}")
        elif line.startswith(";"):
            head.append(line)
        else:
            break
    out = "\n".join(head) + "\n"
    out += f""".amdgcn_target "amdgcn-amd-amdhsa--gfx950"
.text
.globl {NAME}
.p2align 8
.type {NAME},@function
{NAME}:
"""
    out += e.text()
    out += f"""s_endpgm
.section .rodata,"a"
.p2align 6
.amdhsa_kernel {NAME}
  .amdhsa_next_free_vgpr 128
  .amdhsa_next_free_sgpr 102
  .amdhsa_accum_offset 128
  .amdhsa_group_segment_fixed_size 0
  .amdhsa_kernarg_size 104
  .amdhsa_user_sgpr_count 2
  .amdhsa_user_sgpr_kernarg_segment_ptr 1
  .amdhsa_system_sgpr_workgroup_id_x 1
  .amdhsa_float_denorm_mode_32 3
.end_amdhsa_kernel
"""
    return out, e

if __name__ == "__main__":
    cfg = json.loads(sys.argv[2]) if len(sys.argv) > 2 else {}
    txt, e = gen(**cfg)
    open(sys.argv[1], "w").write(txt)
    print("lines", len(e.lines), "auto nops", e.auto_nops)
```

```python
import sys, json
from asmgen import Em

NAME = "parallel_sum__mha_block_cached__dense_activation_gelu__decode_kernel"
REF = "parallel_sum__mha_block_cached__dense_activation_gelu__decode.s.ref"

QP   = 0
HP   = 2048
OP   = 4096
ML   = 6144
FLAG = 6208
CNT  = 6212
LDS_BYTES = 6400
WS_ATT = 0
WS_MLP = 512 * 1024
WS_MLPF = 1024 * 1024
WS_STAMP = 2 * 1024 * 1024
WS_SIZE = 0x1000000

def bitrev4(j):
    return ((j & 1) << 3) | ((j & 2) << 1) | ((j & 4) >> 1) | ((j & 8) >> 3)

def gen(D=5, R=44, N1=30, NB=3, budget=44, hdepth=6, stamps=False, prio=True, gran=4, extraB=0, D2=None):
    e = Em()
    I = e.I
    RING = 64
    assert RING + 4 * R <= 252
    def slot(n): return RING + 4 * (n % R)
    def hs(n): return 64 + 4 * n
    def vr(a, n=4): return f"v[{a}:{a+n-1}]"
    DP = "row_mask:0xf bank_mask:0xf"

    def rowreduce(op, v):
        I(f"{op}_dpp v{v}, v{v}, v{v} quad_perm:[1,0,3,2] {DP}")
        I(f"{op}_dpp v{v}, v{v}, v{v} quad_perm:[2,3,0,1] {DP}")
        I(f"{op}_dpp v{v}, v{v}, v{v} row_half_mirror {DP}")
        I(f"{op}_dpp v{v}, v{v}, v{v} row_mirror {DP}")
    def allreduce(op, v, t):
        rowreduce(op, v)
        I(f"v_mov_b32 v{t}, v{v}")
        I(f"v_permlane16_swap_b32 v{v}, v{t}")
        I(f"{op} v{v}, v{v}, v{t}")
        I(f"v_mov_b32 v{t}, v{v}")
        I(f"v_permlane32_swap_b32 v{v}, v{t}")
        I(f"{op} v{v}, v{v}, v{t}")
    def bf16r(v):
        I(f"v_cvt_pk_bf16_f32 v{v}, v{v}, v{v}")
        I(f"v_and_b32 v{v}, 0xffff0000, v{v}")
    bsel = [0]
    def buildB(src, lane):
        b = 32 + 4 * bsel[0]
        bsel[0] ^= 1
        for r in range(4):
            I(f"v_and_b32_dpp v{b+r}, v{src}, v{8+r} row_newbcast:{lane} {DP}")
        return b
    def lds_store_acc(acc, base):
        I("s_mov_b64 exec, s[96:97]")
        for r in range(4):
            I(f"ds_write_b32 v7, v{acc+r} offset:{base + r*32}")
        I("s_mov_b64 exec, -1")
    nstamp = [0]
    SV = [255]
    def stamp(k=None):
        if not stamps: return
        if k is None:
            k = nstamp[0]
        nstamp[0] = k + 1
        I("s_memrealtime s[98:99]")
        I("s_waitcnt lgkmcnt(0)")
        I(f"v_writelane_b32 v{SV[0]}, s98, {k}")
    def write_stamps():
        if not stamps: return
        I("s_getreg_b32 s98, hwreg(HW_REG_XCC_ID)")
        I(f"v_writelane_b32 v{SV[0]}, s98, 15")
        I("s_lshl_b32 s7, s2, 4")
        I("s_add_u32 s7, s7, s3")
        I("s_lshl_b32 s7, s7, 8")
        I(f"s_add_u32 s7, s7, {WS_STAMP}")
        I("v_lshlrev_b32 v60, 2, v0")
        I(f"buffer_store_dword v{SV[0]}, v60, s[68:71], s7 offen")
    def srd(d, p, size):
        I(f"s_mov_b32 s{d}, s{p}"); I(f"s_mov_b32 s{d+1}, s{p+1}"); I(f"s_mov_b32 s{d+2}, {size}"); I(f"s_mov_b32 s{d+3}, 0x20000")
    sreg = [76]
    def news():
        sreg[0] = 76 + (sreg[0] - 76 + 1) % 16
        return sreg[0]

    I("s_cmp_ge_u32 s2, 256")
    I("s_cbranch_scc1 L_done")
    I("s_load_dwordx16 s[16:31], s[0:1], 0")
    I("s_load_dwordx8 s[32:39], s[0:1], 64")
    I("s_load_dwordx2 s[40:41], s[0:1], 96")
    if stamps:
        I("v_mov_b32 v63, 0")
        I("v_mov_b32 v255, 0")
    I("v_lshrrev_b32 v1, 6, v0")
    I("v_and_b32 v0, 63, v0")
    I("v_readfirstlane_b32 s3, v1")
    I("v_lshlrev_b32 v1, 4, v0")
    I("v_and_b32 v2, 15, v0")
    I("v_lshrrev_b32 v3, 4, v0")
    I("s_lshr_b32 s4, s2, 5")
    I("s_and_b32 s5, s2, 31")
    I("s_and_b32 s8, s3, 3")
    I("s_cmp_ge_u32 s3, 4")
    I("s_cbranch_scc1 L_helper")

    if prio: I("s_setprio 2")
    I("s_lshl_b32 s6, s2, 20")
    I(f"s_mul_i32 s7, s8, {gran*1024}")
    I("s_add_u32 s6, s6, s7")
    I("s_waitcnt lgkmcnt(0)")
    srd(44, 18, 1 << 28)
    tickets = {}
    cur = {}
    def issue(n):
        kind, j = ("K", n) if n < 256 else ("V", n - 256)
        off = (j // gran) * gran * 4096 + (j % gran) * 1024
        hi, lo = off & ~4095, off & 4095
        if cur.get("k") != (kind, hi):
            s = news(); cur["k"] = (kind, hi); cur["s"] = s
            I(f"s_add_u32 s{s}, s6, {hi}")
        sr = "s[44:47]" if kind == "K" else "s[48:51]"
        tickets[n] = I(f"buffer_load_dwordx4 {vr(slot(n))}, v1, {sr}, s{cur['s']} offen offset:{lo} nt")
    W = []
    def setup1():
        srd(48, 20, 1 << 28)
        srd(68, 40, WS_SIZE)
        I("v_lshl_add_u32 v7, v3, 5, v2")
        I("v_lshlrev_b32 v7, 2, v7")
        I("s_lshl_b32 s7, s8, 9")
        I("v_add_u32 v7, s7, v7")
        I("v_mov_b32 v60, 0xffff")
        I("v_mov_b32 v61, 0xffff0000")
        for r in range(4):
            I(f"v_cmp_eq_u32 vcc, {2*r}, v2")
            I(f"v_cndmask_b32 v{8+r}, 0, v60, vcc")
            I(f"v_cmp_eq_u32 vcc, {2*r+1}, v2")
            I(f"v_cndmask_b32 v{8+r}, v{8+r}, v61, vcc")
        I("s_mov_b32 s92, 0xcccccccc"); I("s_mov_b32 s93, 0xcccccccc")
        I("s_mov_b32 s94, 0xaaaaaaaa"); I("s_mov_b32 s95, 0xaaaaaaaa")
        I("s_mov_b32 s96, 0x00ff00ff"); I("s_mov_b32 s97, 0x00ff00ff")
        I("v_lshlrev_b32 v4, 5, v2")
        I("v_and_b32 v5, 3, v0")
        I("v_lshlrev_b32 v5, 3, v5")
        I("s_lshl_b32 s7, s8, 3")
        I("v_mov_b32 v6, s7")
        stamp(0)
    W.append((D, None, None, 40, setup1))
    qt = []
    def barA():
        stamp(1)
        I("s_barrier")
        stamp(2)
        for p in range(4):
            for hf in range(2):
                qt.append(I(f"ds_read_b128 {vr(32 + 8*p + 4*hf)}, v4 offset:{QP + p*512 + hf*16}"))
    W.append((N1, None, None, 100, barA))
    def qsum():
        I("s_waitcnt lgkmcnt(0)")
        for c in range(0, 8, 2):
            I(f"v_pk_add_f32 v[{32+c}:{33+c}], v[{32+c}:{33+c}], v[{40+c}:{41+c}]")
            I(f"v_pk_add_f32 v[{48+c}:{49+c}], v[{48+c}:{49+c}], v[{56+c}:{57+c}]")
        for c in range(0, 8, 2):
            I(f"v_pk_add_f32 v[{32+c}:{33+c}], v[{32+c}:{33+c}], v[{48+c}:{49+c}]")
        for r in range(4):
            I(f"v_cvt_pk_bf16_f32 v{12+r}, v{32+2*r}, v{33+2*r}")
    assert not stamps or True
    W.append((N1, None, None, 20, qsum))
    P = 44
    def consK(k):
        def f():
            u, j = k >> 4, k & 15
            sl = slot(k)
            I(f"v_dot2_f32_bf16 v{P+j}, v{sl}, v12, 0")
            for r in range(1, 4):
                I(f"v_dot2_f32_bf16 v{P+j}, v{sl+r}, v{12+r}, v{P+j}")
            def stepA(a):
                I(f"v_add_f32_dpp v{P+a}, v{P+a}, v{P+a} row_ror:8 row_mask:0xf bank_mask:0x3")
                I(f"v_add_f32_dpp v{P+a}, v{P+a+1}, v{P+a+1} row_ror:8 row_mask:0xf bank_mask:0xc")
            def stepB(a):
                I(f"v_add_f32_dpp v{P+a}, v{P+a}, v{P+a} row_half_mirror row_mask:0xf bank_mask:0x5")
                I(f"v_add_f32_dpp v{P+a}, v{P+a+2}, v{P+a+2} row_half_mirror row_mask:0xf bank_mask:0xa")
            def stepC(a):
                I(f"v_add_f32_dpp v{P+a}, v{P+a}, v{P+a} quad_perm:[2,3,0,1] {DP}")
                I(f"v_add_f32_dpp v{P+a+4}, v{P+a+4}, v{P+a+4} quad_perm:[2,3,0,1] {DP}")
                I(f"v_cndmask_b32 v{P+a}, v{P+a}, v{P+a+4}, s[92:93]")
            def stepD(u):
                I(f"v_add_f32_dpp v{P}, v{P}, v{P} quad_perm:[1,0,3,2] {DP}")
                I(f"v_add_f32_dpp v{P+8}, v{P+8}, v{P+8} quad_perm:[1,0,3,2] {DP}")
                I(f"v_cndmask_b32 v{16+u}, v{P}, v{P+8}, s[94:95]")
                bf16r(16 + u)
                I(f"v_mul_f32 v{16+u}, 0x3db504f3, v{16+u}")
                bf16r(16 + u)
                if u == 0: I("v_mov_b32 v60, v16")
                else: I(f"v_max_f32 v60, v60, v{16+u}")
            if j >= 2 and j % 2 == 0: stepA(j - 2)
            if j >= 5 and j % 4 == 1: stepB(j - 5)
            if j == 11: stepC(0)
            if j == 15:
                stepA(14); stepB(12); stepC(8); stepD(u)
        return f
    for k in range(256):
        W.append((0, k, k, 24 if (k & 15) == 15 else 7, consK(k)))
    def lmax():
        stamp(3)
        allreduce("v_max_f32", 60, 61)
    W.append((0, None, None, 20, lmax))
    def lsum(a0):
        def f():
            for a in range(a0, a0 + 8):
                I(f"v_sub_f32 v{P+a}, v{16+a}, v60")
                I(f"v_mul_f32 v{P+a}, 0x3fb8aa3b, v{P+a}")
                I(f"v_exp_f32 v{P+a}, v{P+a}")
        return f
    W.append((0, None, None, 30, lsum(0)))
    W.append((0, None, None, 30, lsum(8)))
    def lsum2():
        for st in (1, 2, 4, 8):
            for a in range(0, 16, 2 * st):
                I(f"v_add_f32 v{P+a}, v{P+a}, v{P+a+st}")
        I(f"v_mov_b32 v61, v{P}")
        allreduce("v_add_f32", 61, 62)
        I("s_mov_b64 exec, 1")
        I(f"ds_write_b64 v6, v[60:61] offset:{ML}")
        I("s_mov_b64 exec, -1")
    W.append((0, None, None, 40, lsum2))
    W.append(("delay", NB))
    def barB():
        I("s_waitcnt lgkmcnt(0)")
        stamp(4)
        I("s_barrier")
        stamp(5)
        I(f"ds_read_b64 v[60:61], v5 offset:{ML}")
        I("s_waitcnt lgkmcnt(0)")
        I("v_mov_b32 v62, v60")
        I(f"v_max_f32_dpp v62, v62, v62 quad_perm:[1,0,3,2] {DP}")
        I(f"v_max_f32_dpp v62, v62, v62 quad_perm:[2,3,0,1] {DP}")
        I("v_sub_f32 v60, v60, v62")
        I("v_mul_f32 v60, 0x3fb8aa3b, v60")
        I("v_exp_f32 v60, v60")
        I("v_mul_f32 v61, v61, v60")
        I(f"v_add_f32_dpp v61, v61, v61 quad_perm:[1,0,3,2] {DP}")
        I(f"v_add_f32_dpp v61, v61, v61 quad_perm:[2,3,0,1] {DP}")
        I("v_rcp_f32 v61, v61")
    W.append((0, None, None, 100, barB))
    def pcalc(a0):
        def f():
            for a in range(a0, a0 + 4):
                I(f"v_sub_f32 v{16+a}, v{16+a}, v62")
                I(f"v_mul_f32 v{16+a}, 0x3fb8aa3b, v{16+a}")
                I(f"v_exp_f32 v{16+a}, v{16+a}")
            for a in range(a0, a0 + 4):
                I(f"v_mul_f32 v{16+a}, v{16+a}, v61")
                I(f"v_cvt_pk_bf16_f32 v{16+a}, v{16+a}, v{16+a}")
        return f
    W.append((0, None, None, 24, pcalc(0)))
    nb = [None]
    def consV(k):
        def f():
            if k == 0:
                nb[0] = buildB(16, bitrev4(0))
            b = nb[0]
            c = "0" if k == 0 else "v[40:43]"
            if k + 1 < 256:
                nb[0] = buildB(16 + ((k + 1) >> 4), bitrev4((k + 1) & 15))
            return b, c
        return f
    vitems = []
    for k in range(256):
        vitems.append((0, 256 + k, 256 + k, 6, ("V", k)))
    W.append(vitems[0]); W.append(vitems[1])
    W.append((0, None, None, 24, pcalc(4)))
    W.append(vitems[2]); W.append(vitems[3])
    W.append((0, None, None, 24, pcalc(8)))
    W.append(vitems[4]); W.append(vitems[5])
    W.append((0, None, None, 24, pcalc(12)))
    W += vitems[6:]

    landed = -1
    consumed = -1
    wi = 0
    NL = 512
    hold_until = 0
    n = 0
    def Dof(n):
        return D
    while wi < len(W) or n < NL:
        if n < NL:
            assert n - R <= consumed, f"ring overflow at step {n}: consumed {consumed}"
            if n >= D:
                e.wait_vm(tickets[n - D]); landed = max(landed, n - D)
            issue(n)
        bud = budget if n < NL else 10**9
        while wi < len(W) and bud > 0:
            it = W[wi]
            if it[0] == "delay":
                hold_until = n + it[1]; wi += 1
                continue
            ms, need, frees, cost, fn = it
            if n < NL and (n < ms or n < hold_until): break
            if need is not None and need > landed:
                if n < NL: break
                pass
            if isinstance(fn, tuple):
                k = fn[1]
                b, c = consV(k)()
                if need > landed:
                    e.wait_vm(tickets[need]); landed = need
                I(f"v_mfma_f32_16x16x32_bf16 v[40:43], {vr(slot(need))}, {vr(b)}, {c}")
            else:
                if need is not None and need > landed:
                    e.wait_vm(tickets[need]); landed = need
                fn()
            if frees is not None: consumed = frees
            bud -= cost
            wi += 1
        n += 1
    stamp(6)
    lds_store_acc(40, OP)
    I("s_waitcnt lgkmcnt(0)")
    I("s_barrier")
    stamp(7)
    write_stamps()
    I("s_endpgm")

    e.fence()
    e.label("L_helper")
    SV[0] = 63
    e.lastw.clear(); e.mfma_c_read.clear(); e.store_data.clear()
    I("v_lshlrev_b32 v60, 4, v2")
    I("v_lshl_add_u32 v4, v3, 13, v60")
    I("v_lshl_add_u32 v6, v3, 10, v60")
    I("v_min_u32 v61, 6, v2")
    I("v_lshlrev_b32 v61, 4, v61")
    I("s_movk_i32 s7, 3584")
    I("v_mad_u32_u24 v5, v3, s7, v61")
    I("v_lshl_add_u32 v14, v2, 2, v3")
    I("s_lshl_b32 s7, s8, 7")
    I("v_add_u32 v61, s7, v14")
    I("v_lshlrev_b32 v61, 1, v61")
    I("s_lshl_b32 s10, s8, 20")
    I("s_lshl_b32 s7, s5, 8")
    I("s_add_u32 s10, s10, s7")
    I("s_lshl_b32 s7, s4, 10")
    I("s_waitcnt lgkmcnt(0)")
    I("s_add_u32 s16, s16, s7")
    I("s_addc_u32 s17, s17, 0")
    stamp(0)
    t_x = I("global_load_dwordx4 v[48:51], v1, s[16:17] nt")
    t_xc0 = I("global_load_ushort v12, v61, s[16:17] nt")
    t_xc1 = I("global_load_ushort v13, v61, s[16:17] offset:128 nt")
    srd(52, 22, 512*4096*2)
    tq = []
    for s in range(32):
        sr = news(); I(f"s_add_u32 s{sr}, s10, {s*4*8192}")
        tq.append(I(f"buffer_load_dwordx4 {vr(hs(s))}, v4, s[52:55], s{sr} offen nt"))
    srd(56, 24, 4096*512*2)
    srd(60, 28, 512*1792*2)
    srd(64, 32, 1792*512*2)
    srd(68, 40, WS_SIZE)
    srd(72, 36, 8192)
    I("v_lshl_add_u32 v7, v3, 5, v2")
    I("v_lshlrev_b32 v7, 2, v7")
    I("s_lshl_b32 s7, s8, 9")
    I("v_add_u32 v7, s7, v7")
    I("v_mov_b32 v60, 0xffff")
    I("v_mov_b32 v61, 0xffff0000")
    for r in range(4):
        I(f"v_cmp_eq_u32 vcc, {2*r}, v2")
        I(f"v_cndmask_b32 v{8+r}, 0, v60, vcc")
        I(f"v_cmp_eq_u32 vcc, {2*r+1}, v2")
        I(f"v_cndmask_b32 v{8+r}, v{8+r}, v61, vcc")
    I("s_mov_b32 s96, 0x00ff00ff"); I("s_mov_b32 s97, 0x00ff00ff")
    I("s_mul_i32 s11, s8, 458752")
    I("s_mul_i32 s7, s5, 112")
    I("s_add_u32 s11, s11, s7")
    I("s_lshl_b32 s7, s8, 8")
    I("s_mul_i32 s12, s5, 57344")
    I("s_add_u32 s12, s12, s7")
    I("s_lshl_b32 s13, s5, 17")
    I("s_add_u32 s13, s13, s7")
    I("v_mov_b32 v60, 0")
    I(f"ds_write_b32 v60, v60 offset:{CNT}")
    e.wait_vm(t_x)
    for j in range(4):
        I(f"v_lshlrev_b32 v{16+2*j}, 16, v{48+j}")
        I(f"v_and_b32 v{17+2*j}, 0xffff0000, v{48+j}")
    I("v_add_f32 v24, v16, v17"); I("v_add_f32 v25, v18, v19"); I("v_add_f32 v26, v20, v21"); I("v_add_f32 v27, v22, v23")
    I("v_add_f32 v24, v24, v25"); I("v_add_f32 v26, v26, v27"); I("v_add_f32 v24, v24, v26")
    allreduce("v_add_f32", 24, 25)
    I("v_mul_f32 v24, 0x3b000000, v24")
    for j in range(8):
        I(f"v_sub_f32 v{16+j}, v{16+j}, v24")
    I("v_mul_f32 v26, v16, v16")
    I("v_mul_f32 v27, v17, v17")
    for j in range(2, 8, 2):
        I(f"v_fmac_f32 v26, v{16+j}, v{16+j}")
        I(f"v_fmac_f32 v27, v{17+j}, v{17+j}")
    I("v_add_f32 v26, v26, v27")
    allreduce("v_add_f32", 26, 25)
    I("v_mul_f32 v26, 0x3b000000, v26")
    bf16r(26)
    I("v_add_f32 v26, 0x3727c5ac, v26")
    bf16r(26)
    I("v_sqrt_f32 v26, v26")
    bf16r(26)
    I("v_rcp_f32 v26, v26")
    bf16r(24)
    e.wait_vm(t_xc1)
    for v in (12, 13):
        I(f"v_lshlrev_b32 v{v}, 16, v{v}")
        I(f"v_sub_f32 v{v}, v{v}, v24")
        bf16r(v)
        I(f"v_mul_f32 v{v}, v{v}, v26")
        I(f"v_cvt_pk_bf16_f32 v{v}, v{v}, v{v}")
    stamp(1)
    nb_ = buildB(12, 0)
    for s in range(32):
        b = nb_
        if s < 31: nb_ = buildB(12 + ((s + 1) >> 4), (s + 1) & 15)
        e.wait_vm(tq[s])
        c = "0" if s == 0 else "v[40:43]"
        I(f"v_mfma_f32_16x16x32_bf16 v[40:43], {vr(hs(s))}, {vr(b)}, {c}")
    lds_store_acc(40, QP)
    I("s_waitcnt lgkmcnt(0)")
    stamp(2)
    I("s_barrier")
    stamp(3)
    I("v_min_u32 v60, 55, v14")
    I("s_mul_i32 s7, s5, 56")
    I("v_add_u32 v60, s7, v60")
    I("v_lshlrev_b32 v60, 1, v60")
    I("global_load_ushort v15, v60, s[30:31] nt")
    I("v_and_b32 v60, 7, v0")
    I("v_bfe_u32 v61, v0, 3, 2")
    I("v_lshl_add_u32 v60, v61, 5, v60")
    I("v_lshlrev_b32 v28, 1, v60")
    I("s_lshl_b32 s7, s8, 8")
    I("v_add_u32 v29, s7, v28")
    for r in range(4):
        I(f"global_load_ushort v{16+r}, v29, s[16:17] offset:{r*16} nt")
    t1 = {}
    def iss_w1(s):
        sr = news(); I(f"s_add_u32 s{sr}, s11, {s*4*3584}")
        t1[s] = I(f"buffer_load_dwordx4 {vr(hs(s))}, v5, s[60:63], s{sr} offen nt")
    for s in range(hdepth): iss_w1(s)
    for s in range(32):
        b = buildB(12 + (s >> 4), s & 15)
        e.wait_vm(t1[s])
        c = "0" if s == 0 else "v[40:43]"
        I(f"v_mfma_f32_16x16x32_bf16 v[40:43], {vr(hs(s))}, {vr(b)}, {c}")
        if s + hdepth < 32: iss_w1(s + hdepth)
    lds_store_acc(40, HP)
    lst = [("w2", t) for t in range(14)] + [("wo", t) for t in range(32)]
    tl = []
    for n_, (kind, t) in enumerate(lst):
        if n_ >= hdepth: e.wait_vm(tl[n_ - hdepth])
        sr = news()
        if kind == "w2":
            I(f"s_add_u32 s{sr}, s12, {t*4096}")
            tl.append(I(f"buffer_load_dwordx4 {vr(hs(32+t))}, v6, s[64:67], s{sr} offen nt"))
        else:
            I(f"s_add_u32 s{sr}, s13, {t*4096}")
            tl.append(I(f"buffer_load_dwordx4 {vr(hs(t))}, v6, s[56:59], s{sr} offen nt"))
    I("v_lshlrev_b32 v30, 2, v14")
    I("v_lshl_add_u32 v31, v3, 3, v2")
    I("v_lshlrev_b32 v31, 4, v31")
    I("s_lshl_b32 s14, s2, 11")
    I("s_lshl_b32 s7, s8, 9")
    I("s_add_u32 s14, s14, s7")
    I("s_waitcnt vmcnt(0) lgkmcnt(0)")
    stamp(4)
    I("s_barrier")
    stamp(5)
    th = [I(f"ds_read_b32 v{48+p}, v30 offset:{HP + p*512}") for p in range(4)]
    I("s_waitcnt lgkmcnt(0)")
    I("v_add_f32 v48, v48, v49"); I("v_add_f32 v50, v50, v51"); I("v_add_f32 v48, v48, v50")
    bf16r(48)
    I("v_lshlrev_b32 v15, 16, v15")
    I("v_add_f32 v48, v48, v15")
    bf16r(48)
    I("v_mul_f32 v49, v48, v48")
    I("v_mul_f32 v49, 0x3d372713, v49")
    I("v_add_f32 v49, 1.0, v49")
    I("v_mul_f32 v49, v49, v48")
    I("v_mul_f32 v49, 0xc0135761, v49")
    I("v_exp_f32 v49, v49")
    I("v_add_f32 v49, 1.0, v49")
    I("v_rcp_f32 v49, v49")
    I("v_mul_f32 v49, v49, v48")
    I("v_cvt_pk_bf16_f32 v49, v49, v49")
    nb_ = buildB(49, 0)
    for t in range(14):
        b = nb_
        if t < 13: nb_ = buildB(49, t + 1)
        c = "0" if t == 0 else "v[44:47]"
        I(f"v_mfma_f32_16x16x32_bf16 v[44:47], {vr(hs(32+t))}, {vr(b)}, {c}")
    I(f"s_add_u32 s7, s14, {WS_MLP}")
    I("s_mov_b64 exec, s[96:97]")
    I("buffer_store_dwordx4 v[44:47], v31, s[68:71], s7 offen sc1")
    I("s_mov_b64 exec, 1")
    I("v_mov_b32 v60, 0")
    I("v_mov_b32 v61, 1")
    I("s_waitcnt vmcnt(0)")
    I(f"ds_add_rtn_u32 v62, v60, v61 offset:{CNT}")
    I("s_waitcnt lgkmcnt(0)")
    I("v_readfirstlane_b32 s7, v62")
    I("s_mov_b64 exec, -1")
    I("s_cmp_lg_u32 s7, 3")
    I("s_cbranch_scc1 L_mlp_done")
    I("s_lshl_b32 s7, s4, 5")
    I("v_mov_b32 v60, s7")
    I("s_mov_b64 exec, 1")
    I("global_atomic_add v62, v60, v61, s[38:39] offset:16 sc0")
    I("s_waitcnt vmcnt(0)")
    I("v_readfirstlane_b32 s7, v62")
    I("s_mov_b64 exec, -1")
    I("s_cmp_lg_u32 s7, 31")
    I("s_cbranch_scc1 L_mlp_done")
    I("v_lshrrev_b32 v60, 5, v0")
    I("v_lshlrev_b32 v60, 11, v60")
    I("v_and_b32 v61, 31, v0")
    I("v_lshl_add_u32 v60, v61, 4, v60")
    I("v_lshlrev_b32 v61, 4, v61")
    I("s_lshl_b32 s15, s4, 16")
    I(f"s_add_u32 s15, s15, {WS_MLP}")
    I("s_lshl_b32 s9, s4, 11")
    I(f"s_add_u32 s9, s9, {WS_MLPF}")
    for cb in range(4):
        for r in range(4):
            I(f"global_load_ushort v{52+r}, v28, s[34:35] offset:{cb*256 + r*16} nt")
        for j in range(16):
            sr = news(); I(f"s_add_u32 s{sr}, s15, {j*4096 + cb*512}")
            I(f"buffer_load_dwordx4 {vr(hs(32+j))}, v60, s[68:71], s{sr} offen sc1")
        I("s_waitcnt vmcnt(0)")
        for st in (1, 2, 4, 8):
            for j in range(0, 16, 2 * st):
                a, bb = hs(32 + j), hs(32 + j + st)
                I(f"v_pk_add_f32 v[{a}:{a+1}], v[{a}:{a+1}], v[{bb}:{bb+1}]")
                I(f"v_pk_add_f32 v[{a+2}:{a+3}], v[{a+2}:{a+3}], v[{bb+2}:{bb+3}]")
        a = hs(32)
        for r in range(4): I(f"v_mov_b32 v{a+4+r}, v{a+r}")
        for r in range(4): I(f"v_permlane32_swap_b32 v{a+r}, v{a+4+r}")
        for r in range(4): I(f"v_add_f32 v{a+r}, v{a+r}, v{a+4+r}")
        for r in range(4): bf16r(a + r)
        for r in range(4):
            I(f"v_lshlrev_b32 v{52+r}, 16, v{52+r}")
            I(f"v_add_f32 v{56+r}, v{a+r}, v{52+r}")
        for r in range(4): bf16r(56 + r)
        I("s_mov_b64 exec, 0xffffffff")
        I(f"buffer_store_dwordx4 v[56:59], v61, s[68:71], s9 offen offset:{cb*512} sc1")
        I("s_mov_b64 exec, -1")
    I("s_waitcnt vmcnt(0)")
    e.fence()
    e.label("L_mlp_done")
    I("v_lshrrev_b32 v26, 5, v0")
    I("v_lshlrev_b32 v26, 11, v26")
    I("v_and_b32 v27, 31, v0")
    I("v_lshl_add_u32 v26, v27, 4, v26")
    I("v_lshlrev_b32 v27, 4, v27")
    I("s_lshl_b32 s15, s4, 16")
    I("s_lshl_b32 s7, s8, 9")
    I("s_add_u32 s15, s15, s7")
    I("s_lshl_b32 s9, s4, 11")
    I("s_add_u32 s9, s9, s7")
    I(f"s_add_u32 s9, s9, {WS_MLPF}")
    for j in range(16):
        I(f"s_add_u32 s{76+j}, s15, {j*4096}")
    I("s_lshl_b32 s7, s4, 5")
    I("v_mov_b32 v24, s7")
    I("v_mov_b32 v25, 1")
    I("v_mov_b32 v23, 0")
    for r in range(4):
        I(f"v_lshlrev_b32 v{16+r}, 16, v{16+r}")
    I("s_lshl_b32 s10, s4, 10")
    stamp(6)
    I("s_barrier")
    stamp(7)
    to = []
    for u in range(2):
        for p in range(4):
            to.append(I(f"ds_read_b32 v{48+4*u+p}, v30 offset:{OP + p*512 + u*256}"))
    e.wait_lgkm(to[3])
    I("v_add_f32 v48, v48, v49"); I("v_add_f32 v50, v50, v51"); I("v_add_f32 v48, v48, v50")
    I("v_cvt_pk_bf16_f32 v48, v48, v48")
    e.wait_lgkm(to[7])
    I("v_add_f32 v52, v52, v53"); I("v_add_f32 v54, v54, v55")
    nb_ = buildB(48, 0)
    I("v_add_f32 v52, v52, v54")
    I("v_cvt_pk_bf16_f32 v49, v52, v52")
    for t in range(32):
        b = nb_
        if t < 31: nb_ = buildB(48 + ((t + 1) >> 4), (t + 1) & 15)
        c = "0" if t == 0 else "v[40:43]"
        I(f"v_mfma_f32_16x16x32_bf16 v[40:43], {vr(hs(t))}, {vr(b)}, {c}")
    I("s_mov_b64 exec, s[96:97]")
    I("buffer_store_dwordx4 v[40:43], v31, s[68:71], s14 offen sc1")
    I("s_mov_b64 exec, -1")
    stamp(8)
    I("s_waitcnt vmcnt(0)")
    I("s_barrier")
    stamp(9)
    I("s_cmp_lg_u32 s8, 0")
    I("s_cbranch_scc1 L_wait")
    I("s_mov_b64 exec, 1")
    I("global_atomic_add v62, v24, v25, s[38:39] sc0")
    I("s_waitcnt vmcnt(0)")
    I(f"ds_write_b32 v23, v62 offset:{FLAG}")
    I("s_mov_b64 exec, -1")
    I("s_waitcnt lgkmcnt(0)")
    e.label("L_wait")
    I("s_barrier")
    I(f"ds_read_b32 v62, v23 offset:{FLAG}")
    I("s_waitcnt lgkmcnt(0)")
    I("v_readfirstlane_b32 s7, v62")
    stamp(10)
    I("s_cmp_lg_u32 s7, 31")
    I("s_cbranch_scc1 L_end")
    tf = []
    for j in range(16):
        tf.append(I(f"buffer_load_dwordx4 {vr(hs(j))}, v26, s[68:71], s{76+j} offen sc1"))
    tm = I("buffer_load_dwordx4 v[44:47], v27, s[68:71], s9 offen sc1")
    for j in range(0, 16, 2):
        e.wait_vm(tf[j + 1])
        a, bb = hs(j), hs(j + 1)
        I(f"v_pk_add_f32 v[{a}:{a+1}], v[{a}:{a+1}], v[{bb}:{bb+1}]")
        I(f"v_pk_add_f32 v[{a+2}:{a+3}], v[{a+2}:{a+3}], v[{bb+2}:{bb+3}]")
    for st in (2, 4, 8):
        for j in range(0, 16, 2 * st):
            a, bb = hs(j), hs(j + st)
            I(f"v_pk_add_f32 v[{a}:{a+1}], v[{a}:{a+1}], v[{bb}:{bb+1}]")
            I(f"v_pk_add_f32 v[{a+2}:{a+3}], v[{a+2}:{a+3}], v[{bb+2}:{bb+3}]")
    a = hs(0)
    for r in range(4): I(f"v_mov_b32 v{a+4+r}, v{a+r}")
    for r in range(4): I(f"v_permlane32_swap_b32 v{a+r}, v{a+4+r}")
    for r in range(4): I(f"v_add_f32 v{a+r}, v{a+r}, v{a+4+r}")
    for r in range(4): bf16r(a + r)
    for r in range(4): I(f"v_add_f32 v{a+r}, v{a+r}, v{16+r}")
    for r in range(4): bf16r(a + r)
    e.wait_vm(tm)
    for r in range(4): I(f"v_add_f32 v{a+r}, v{a+r}, v{44+r}")
    for r in range(4): I(f"v_cvt_pk_bf16_f32 v{a+r}, v{a+r}, v{a+r}")
    I("s_mov_b64 exec, 0xffffffff")
    for r in range(4):
        I(f"buffer_store_short v{a+r}, v29, s[72:75], s10 offen offset:{r*16}")
    I("s_mov_b64 exec, -1")
    e.fence()
    e.label("L_end")
    stamp(11)
    write_stamps()
    e.label("L_done")

    ref = open(REF).read()
    head = []
    for line in ref.splitlines():
        if line.startswith("; @launch"):
            head.append(f"; @launch grid=(256,1,1) block=(512,1,1) lds={LDS_BYTES}")
        elif line.startswith(";"):
            head.append(line)
        else:
            break
    out = "\n".join(head) + "\n"
    out += f""".amdgcn_target "amdgcn-amd-amdhsa--gfx950"
.text
.globl {NAME}
.p2align 8
.type {NAME},@function
{NAME}:
"""
    out += e.text()
    out += f"""s_endpgm
.section .rodata,"a"
.p2align 6
.amdhsa_kernel {NAME}
  .amdhsa_next_free_vgpr 256
  .amdhsa_next_free_sgpr 102
  .amdhsa_accum_offset 256
  .amdhsa_group_segment_fixed_size 0
  .amdhsa_kernarg_size 104
  .amdhsa_user_sgpr_count 2
  .amdhsa_user_sgpr_kernarg_segment_ptr 1
  .amdhsa_system_sgpr_workgroup_id_x 1
  .amdhsa_float_denorm_mode_32 3
.end_amdhsa_kernel
"""
    return out, e

if __name__ == "__main__":
    cfg = json.loads(sys.argv[2]) if len(sys.argv) > 2 else {}
    txt, e = gen(**cfg)
    open(sys.argv[1], "w").write(txt)
    print("lines", len(e.lines), "auto nops", e.auto_nops)
```

```python
import sys, json
from asmgen import Em

NAME = "parallel_sum__mha_block_cached__dense_activation_gelu__decode_kernel"
REF = "parallel_sum__mha_block_cached__dense_activation_gelu__decode.s.ref"

QP   = 0
QW   = 8192
HP   = 12288
ML   = 20480
OP   = 20992
OUTP = 29184
FLAG = 37376
LDS_BYTES = 37888

def bitrev4(j):
    return ((j & 1) << 3) | ((j & 2) << 1) | ((j & 4) >> 1) | ((j & 8) >> 3)

def gen(mimic=True, depth=16, kvflags="nt", wflags="", w2pos=32, stamps=False, early_bar=False, samew=False):
    e = Em()
    I = e.I
    RING = 128 - 4 * depth
    def slot(n): return RING + 4 * (n % depth)
    def vr(a, n=4): return f"v[{a}:{a+n-1}]"

    def allreduce(op, v, t):
        I(f"{op}_dpp v{v}, v{v}, v{v} quad_perm:[1,0,3,2] row_mask:0xf bank_mask:0xf")
        I(f"{op}_dpp v{v}, v{v}, v{v} quad_perm:[2,3,0,1] row_mask:0xf bank_mask:0xf")
        I(f"{op}_dpp v{v}, v{v}, v{v} row_half_mirror row_mask:0xf bank_mask:0xf")
        I(f"{op}_dpp v{v}, v{v}, v{v} row_mirror row_mask:0xf bank_mask:0xf")
        I(f"v_mov_b32 v{t}, v{v}")
        I(f"v_permlane16_swap_b32 v{v}, v{t}")
        I(f"{op} v{v}, v{v}, v{t}")
        I(f"v_mov_b32 v{t}, v{v}")
        I(f"v_permlane32_swap_b32 v{v}, v{t}")
        I(f"{op} v{v}, v{v}, v{t}")
    def rowreduce(op, v):
        I(f"{op}_dpp v{v}, v{v}, v{v} quad_perm:[1,0,3,2] row_mask:0xf bank_mask:0xf")
        I(f"{op}_dpp v{v}, v{v}, v{v} quad_perm:[2,3,0,1] row_mask:0xf bank_mask:0xf")
        I(f"{op}_dpp v{v}, v{v}, v{v} row_half_mirror row_mask:0xf bank_mask:0xf")
        I(f"{op}_dpp v{v}, v{v}, v{v} row_mirror row_mask:0xf bank_mask:0xf")
    def bf16r(v):
        I(f"v_cvt_pk_bf16_f32 v{v}, v{v}, v{v}")
        I(f"v_and_b32 v{v}, 0xffff0000, v{v}")
    bsel = [0]
    def buildB(src, lane):
        b = 20 + 4 * bsel[0]
        bsel[0] ^= 1
        for r in range(4):
            I(f"v_and_b32_dpp v{b+r}, v{src}, v{8+r} row_newbcast:{lane} row_mask:0xf bank_mask:0xf")
        return b
    def lds_store_acc(acc, base):
        I("s_mov_b64 exec, s[96:97]")
        for r in range(4):
            I(f"ds_write_b32 v7, v{acc+r} offset:{base + r*32}")
        I("s_mov_b64 exec, -1")
    nstamp = [0]
    def stamp():
        if not stamps: return
        k = nstamp[0]; nstamp[0] += 1
        I(f"s_memrealtime s[{98}:{99}]")
        I("s_waitcnt lgkmcnt(0)")
        I(f"v_writelane_b32 v63, s98, {k}")

    I("s_cmp_ge_u32 s2, 256")
    I("s_cbranch_scc1 L_done")
    I("s_load_dwordx16 s[16:31], s[0:1], 0")
    I("s_load_dwordx8 s[32:39], s[0:1], 64")
    I("s_load_dwordx2 s[40:41], s[0:1], 96")
    if stamps:
        I("v_mov_b32 v63, 0")
    I("v_lshrrev_b32 v1, 6, v0")
    I("v_and_b32 v0, 63, v0")
    I("v_readfirstlane_b32 s3, v1")
    I("v_lshlrev_b32 v1, 4, v0")
    I("v_and_b32 v2, 15, v0")
    I("v_lshrrev_b32 v3, 4, v0")
    I("s_lshr_b32 s4, s2, 5")
    I("s_and_b32 s5, s2, 31")
    I("s_and_b32 s8, s3, 3")
    I("s_lshr_b32 s9, s3, 2")
    I("s_lshl_b32 s6, s2, 20")
    I("s_lshl_b32 s7, s3, 12")
    I("s_add_u32 s6, s6, s7")
    I("v_lshlrev_b32 v60, 4, v2")
    I("v_lshl_add_u32 v4, v3, 13, v60")
    I("v_lshl_add_u32 v6, v3, 10, v60")
    I("v_min_u32 v61, 6, v2")
    I("v_lshlrev_b32 v61, 4, v61")
    I("s_movk_i32 s7, 3584")
    I("v_mad_u32_u24 v5, v3, s7, v61")
    I("v_and_b32 v61, 7, v2")
    I("v_lshl_add_u32 v61, v61, 2, v3")
    I("s_lshl_b32 s7, s3, 5")
    I("v_add_u32 v61, s7, v61")
    I("v_lshlrev_b32 v61, 1, v61")
    I("v_and_b32 v62, 7, v0")
    I("v_lshl_add_u32 v62, v62, 2, s7")
    I("v_lshlrev_b32 v62, 1, v62")
    I("v_and_b32 v59, 3, v2")
    I("v_lshl_add_u32 v59, v59, 2, v3")
    I("s_lshl_b32 s7, s9, 4")
    I("v_add_u32 v59, s7, v59")
    I("v_min_u32 v58, 55, v59")
    I("s_mul_i32 s7, s5, 56")
    I("v_add_u32 v58, s7, v58")
    I("v_lshlrev_b32 v58, 1, v58")
    I("v_lshl_add_u32 v7, v3, 5, v2")
    I("v_lshlrev_b32 v7, 2, v7")
    I("s_lshl_b32 s7, s3, 9")
    I("v_add_u32 v7, s7, v7")
    I("v_mov_b32 v50, 0xffff")
    I("v_mov_b32 v51, 0xffff0000")
    for r in range(4):
        I(f"v_cmp_eq_u32 vcc, {2*r}, v2")
        I(f"v_cndmask_b32 v{8+r}, 0, v50, vcc")
        I(f"v_cmp_eq_u32 vcc, {2*r+1}, v2")
        I(f"v_cndmask_b32 v{8+r}, v{8+r}, v51, vcc")
    I("s_mov_b32 s92, 0xcccccccc"); I("s_mov_b32 s93, 0xcccccccc")
    I("s_mov_b32 s94, 0xaaaaaaaa"); I("s_mov_b32 s95, 0xaaaaaaaa")
    I("s_mov_b32 s96, 0x00ff00ff"); I("s_mov_b32 s97, 0x00ff00ff")
    I("s_waitcnt lgkmcnt(0)")
    I("s_lshl_b32 s7, s4, 10")
    I("s_add_u32 s16, s16, s7")
    I("s_addc_u32 s17, s17, 0")
    t_x = I("global_load_dwordx4 v[36:39], v1, s[16:17]")
    t_xc = I("global_load_ushort v56, v61, s[16:17]")
    def srd(d, p, size):
        I(f"s_mov_b32 s{d}, s{p}"); I(f"s_mov_b32 s{d+1}, s{p+1}"); I(f"s_mov_b32 s{d+2}, {size}"); I(f"s_mov_b32 s{d+3}, 0x20000")
    srd(52, 22, 512*4096*2)
    srd(44, 18, 1 << 28)
    stream = [("wq", s) for s in range(8)] + [("K", k) for k in range(64)] + [("w1", s) for s in range(8)]
    vs = [("V", k) for k in range(64)]
    stream += vs[:w2pos] + [("w2", t) for t in range(4)] + vs[w2pos:] + [("wo", t) for t in range(8)]
    tickets = {}
    sreg = [76]
    cur_kv = {}
    I("s_lshl_b32 s10, s3, 18")
    I("s_lshl_b32 s7, s5, 8")
    I("s_add_u32 s10, s10, s7")
    nissued = [0]
    def issue_next():
        n = nissued[0]
        if n >= len(stream): return
        nissued[0] += 1
        kind, idx = stream[n]
        d = vr(slot(n))
        def news():
            sreg[0] = 76 + (sreg[0] - 76 + 1) % 16
            return sreg[0]
        if kind in ("K", "V"):
            T, sub = idx >> 2, idx & 3
            if sub == 0 or cur_kv.get("k") != (kind, T):
                s = news(); cur_kv["k"] = (kind, T); cur_kv["s"] = s
                I(f"s_add_u32 s{s}, s6, {T*65536}")
            s = cur_kv["s"]
            sr = "s[44:47]" if kind == "K" else "s[48:51]"
            tickets[n] = I(f"buffer_load_dwordx4 {d}, v1, {sr}, s{s} offen offset:{sub*1024} {kvflags}")
        elif kind == "wq":
            s = news(); I(f"s_add_u32 s{s}, s10, {idx*4*8192}" if not samew else f"s_mov_b32 s{s}, 0")
            tickets[n] = I(f"buffer_load_dwordx4 {d}, v4, s[52:55], s{s} offen {wflags}")
        elif kind == "w1":
            s = news(); I(f"s_add_u32 s{s}, s11, {idx*4*3584}" if not samew else f"s_mov_b32 s{s}, 0")
            tickets[n] = I(f"buffer_load_dwordx4 {d}, v5, s[60:63], s{s} offen {wflags}")
        elif kind == "w2":
            s = news(); I(f"s_add_u32 s{s}, s12, {idx*4096}" if not samew else f"s_mov_b32 s{s}, 0")
            tickets[n] = I(f"buffer_load_dwordx4 {d}, v6, s[64:67], s{s} offen {wflags}")
        elif kind == "wo":
            s = news(); I(f"s_add_u32 s{s}, s13, {idx*4096}" if not samew else f"s_mov_b32 s{s}, 0")
            tickets[n] = I(f"buffer_load_dwordx4 {d}, v6, s[56:59], s{s} offen {wflags}")
    for n_ in range(depth):
        if early_bar and n_ == 8: I("s_barrier")
        issue_next()
    t_b1 = I("global_load_ushort v57, v58, s[30:31]")
    t_xf = I("global_load_dwordx2 v[52:53], v62, s[16:17]")
    t_b2 = I("global_load_dwordx2 v[54:55], v62, s[34:35]")
    srd(48, 20, 1 << 28)
    srd(56, 24, 4096*512*2)
    srd(60, 28, 512*1792*2)
    srd(64, 32, 1792*512*2)
    srd(68, 40, 1 << 20)
    srd(72, 36, 8192)
    I("s_mul_i32 s11, s3, 114688")
    I("s_mul_i32 s7, s5, 112")
    I("s_add_u32 s11, s11, s7")
    I("s_mul_i32 s12, s5, 56")
    I("s_lshl_b32 s7, s9, 4")
    I("s_add_u32 s12, s12, s7")
    I("s_lshl_b32 s12, s12, 10")
    I("s_lshl_b32 s7, s8, 8")
    I("s_add_u32 s12, s12, s7")
    I("s_lshl_b32 s13, s5, 7")
    I("s_lshl_b32 s14, s9, 5")
    I("s_add_u32 s13, s13, s14")
    I("s_lshl_b32 s13, s13, 10")
    I("s_add_u32 s13, s13, s7")
    stamp()
    e.wait_vm(t_x)
    for j in range(4):
        I(f"v_lshlrev_b32 v{40+2*j}, 16, v{36+j}")
        I(f"v_and_b32 v{41+2*j}, 0xffff0000, v{36+j}")
    I("v_add_f32 v48, v40, v41"); I("v_add_f32 v49, v42, v43"); I("v_add_f32 v50, v44, v45"); I("v_add_f32 v51, v46, v47")
    I("v_add_f32 v48, v48, v49"); I("v_add_f32 v50, v50, v51"); I("v_add_f32 v48, v48, v50")
    allreduce("v_add_f32", 48, 49)
    I("v_mul_f32 v48, 0x3b000000, v48")
    for j in range(8):
        I(f"v_sub_f32 v{40+j}, v{40+j}, v48")
    I("v_mul_f32 v50, v40, v40")
    I("v_mul_f32 v51, v41, v41")
    for j in range(2, 8, 2):
        I(f"v_fmac_f32 v50, v{40+j}, v{40+j}")
        I(f"v_fmac_f32 v51, v{41+j}, v{41+j}")
    I("v_add_f32 v50, v50, v51")
    allreduce("v_add_f32", 50, 49)
    I("v_mul_f32 v50, 0x3b000000, v50")
    if mimic:
        bf16r(50)
        I("v_add_f32 v50, 0x3727c5ac, v50")
        bf16r(50)
        I("v_sqrt_f32 v50, v50")
        bf16r(50)
        I("v_rcp_f32 v50, v50")
        bf16r(48)
    else:
        I("v_add_f32 v50, 0x3727c5ac, v50")
        I("v_rsq_f32 v50, v50")
    e.wait_vm(t_xc)
    I("v_lshlrev_b32 v56, 16, v56")
    I("v_sub_f32 v56, v56, v48")
    if mimic: bf16r(56)
    I("v_mul_f32 v56, v56, v50")
    I("v_cvt_pk_bf16_f32 v58, v56, v56")
    stamp()
    ncons = 0
    for s in range(8):
        b = buildB(58, s)
        e.wait_vm(tickets[ncons])
        c = "0" if s == 0 else "v[28:31]"
        I(f"v_mfma_f32_16x16x32_bf16 v[28:31], {vr(slot(ncons))}, {vr(b)}, {c}")
        ncons += 1
        issue_next()
    lds_store_acc(28, QP)
    I("v_lshlrev_b32 v60, 5, v2")
    I("v_lshl_add_u32 v60, v3, 3, v60")
    I("v_lshlrev_b32 v61, 4, v2")
    I("s_lshl_b32 s7, s3, 8")
    I("v_add_u32 v61, s7, v61")
    I("v_lshl_add_u32 v62, v3, 2, v61")
    I("s_waitcnt lgkmcnt(0)")
    I("s_barrier")
    stamp()
    tk = []
    for j in range(16):
        tk.append(I(f"ds_read_b64 v[{20+2*j}:{21+2*j}], v60 offset:{QP + j*512}"))
    for j in range(0, 16, 2):
        e.wait_lgkm(tk[j+1])
        I(f"v_pk_add_f32 v[{20+2*j}:{21+2*j}], v[{20+2*j}:{21+2*j}], v[{22+2*j}:{23+2*j}]")
    for st in (4, 8, 16):
        for j in range(0, 16, st):
            I(f"v_pk_add_f32 v[{20+2*j}:{21+2*j}], v[{20+2*j}:{21+2*j}], v[{20+2*j+st}:{21+2*j+st}]")
    I("v_cvt_pk_bf16_f32 v22, v20, v21")
    I(f"ds_write_b32 v62, v22 offset:{QW}")
    I("s_waitcnt lgkmcnt(0)")
    I(f"ds_read_b128 v[12:15], v61 offset:{QW}")
    I("s_waitcnt lgkmcnt(0)")
    stamp()
    P = 36
    for k in range(64):
        u, j = k >> 4, k & 15
        e.wait_vm(tickets[ncons])
        sl = slot(ncons)
        I(f"v_dot2_f32_bf16 v{P+j}, v{sl}, v12, 0")
        for r in range(1, 4):
            I(f"v_dot2_f32_bf16 v{P+j}, v{sl+r}, v{12+r}, v{P+j}")
        ncons += 1
        issue_next()
        def stepA(a):
            I(f"v_add_f32_dpp v{P+a}, v{P+a}, v{P+a} row_ror:8 row_mask:0xf bank_mask:0x3")
            I(f"v_add_f32_dpp v{P+a}, v{P+a+1}, v{P+a+1} row_ror:8 row_mask:0xf bank_mask:0xc")
        def stepB(a):
            I(f"v_add_f32_dpp v{P+a}, v{P+a}, v{P+a} row_half_mirror row_mask:0xf bank_mask:0x5")
            I(f"v_add_f32_dpp v{P+a}, v{P+a+2}, v{P+a+2} row_half_mirror row_mask:0xf bank_mask:0xa")
        def stepC(a):
            I(f"v_add_f32_dpp v{P+a}, v{P+a}, v{P+a} quad_perm:[2,3,0,1] row_mask:0xf bank_mask:0xf")
            I(f"v_add_f32_dpp v{P+a+4}, v{P+a+4}, v{P+a+4} quad_perm:[2,3,0,1] row_mask:0xf bank_mask:0xf")
            I(f"v_cndmask_b32 v{P+a}, v{P+a}, v{P+a+4}, s[92:93]")
        def stepD(u):
            I(f"v_add_f32_dpp v{P}, v{P}, v{P} quad_perm:[1,0,3,2] row_mask:0xf bank_mask:0xf")
            I(f"v_add_f32_dpp v{P+8}, v{P+8}, v{P+8} quad_perm:[1,0,3,2] row_mask:0xf bank_mask:0xf")
            I(f"v_cndmask_b32 v{16+u}, v{P}, v{P+8}, s[94:95]")
        if j >= 2 and j % 2 == 0: stepA(j - 2)
        if j >= 5 and j % 4 == 1: stepB(j - 5)
        if j == 11: stepC(0)
        if j == 15:
            stepA(14); stepB(12); stepC(8); stepD(u)
    stamp()
    if mimic:
        for a in (16, 18):
            I(f"v_cvt_pk_bf16_f32 v36, v{a}, v{a+1}")
            I(f"v_lshlrev_b32 v{a}, 16, v36")
            I(f"v_and_b32 v{a+1}, 0xffff0000, v36")
    for a in range(16, 20):
        I(f"v_mul_f32 v{a}, 0x3db504f3, v{a}")
    if mimic:
        for a in (16, 18):
            I(f"v_cvt_pk_bf16_f32 v36, v{a}, v{a+1}")
            I(f"v_lshlrev_b32 v{a}, 16, v36")
            I(f"v_and_b32 v{a+1}, 0xffff0000, v36")
    I("v_max3_f32 v36, v16, v17, v18")
    I("v_max_f32 v36, v36, v19")
    allreduce("v_max_f32", 36, 37)
    for a in range(4):
        I(f"v_sub_f32 v{38+a}, v{16+a}, v36")
        I(f"v_mul_f32 v{38+a}, 0x3fb8aa3b, v{38+a}")
        I(f"v_exp_f32 v{38+a}, v{38+a}")
    I("v_add_f32 v38, v38, v39"); I("v_add_f32 v40, v40, v41"); I("v_add_f32 v37, v38, v40")
    allreduce("v_add_f32", 37, 38)
    I("s_lshl_b32 s7, s3, 3")
    I("v_mov_b32 v38, s7")
    I("s_mov_b64 exec, 1")
    I(f"ds_write_b64 v38, v[36:37] offset:{ML}")
    I("s_mov_b64 exec, -1")
    for s in range(8):
        b = buildB(58, s)
        e.wait_vm(tickets[ncons])
        c = "0" if s == 0 else "v[32:35]"
        I(f"v_mfma_f32_16x16x32_bf16 v[32:35], {vr(slot(ncons))}, {vr(b)}, {c}")
        ncons += 1
        issue_next()
    lds_store_acc(32, HP)
    I("v_lshlrev_b32 v60, 3, v2")
    I("v_lshrrev_b32 v61, 2, v2")
    I("v_lshlrev_b32 v61, 11, v61")
    I("v_lshl_add_u32 v61, v59, 2, v61")
    I("s_waitcnt lgkmcnt(0)")
    I("s_barrier")
    stamp()
    t_ml = I(f"ds_read_b64 v[36:37], v60 offset:{ML}")
    th = [I(f"ds_read_b32 v{44+jj}, v61 offset:{HP + jj*512}") for jj in range(4)]
    e.wait_lgkm(t_ml)
    I("v_mov_b32 v38, v36")
    rowreduce("v_max_f32", 38)
    I("v_sub_f32 v36, v36, v38")
    I("v_mul_f32 v36, 0x3fb8aa3b, v36")
    I("v_exp_f32 v36, v36")
    I("v_mul_f32 v37, v37, v36")
    rowreduce("v_add_f32", 37)
    I("v_rcp_f32 v37, v37")
    for a in range(4):
        I(f"v_sub_f32 v{16+a}, v{16+a}, v38")
        I(f"v_mul_f32 v{16+a}, 0x3fb8aa3b, v{16+a}")
        I(f"v_exp_f32 v{16+a}, v{16+a}")
    for a in range(4):
        I(f"v_mul_f32 v{16+a}, v{16+a}, v37")
        I(f"v_cvt_pk_bf16_f32 v{16+a}, v{16+a}, v{16+a}")
    e.wait_lgkm(th[3])
    I("v_add_f32 v44, v44, v45"); I("v_add_f32 v46, v46, v47"); I("v_add_f32 v44, v44, v46")
    I("v_add_f32_dpp v44, v44, v44 row_ror:4 row_mask:0xf bank_mask:0xf")
    I("v_add_f32_dpp v44, v44, v44 row_ror:8 row_mask:0xf bank_mask:0xf")
    if mimic: bf16r(44)
    I("v_lshlrev_b32 v57, 16, v57")
    I("v_add_f32 v44, v44, v57")
    if mimic: bf16r(44)
    I("v_mul_f32 v45, v44, v44")
    I("v_mul_f32 v45, 0x3d372713, v45")
    I("v_add_f32 v45, 1.0, v45")
    I("v_mul_f32 v45, v45, v44")
    I("v_mul_f32 v45, 0xc0135761, v45")
    I("v_exp_f32 v45, v45")
    I("v_add_f32 v45, 1.0, v45")
    I("v_rcp_f32 v45, v45")
    I("v_mul_f32 v45, v45, v44")
    I("v_cvt_pk_bf16_f32 v45, v45, v45")
    I("v_cmp_gt_u32 vcc, 56, v59")
    I("v_cndmask_b32 v59, 0, v45, vcc")
    stamp()
    first_pv = True; first_out = True
    pend = None
    todo = [stream[n] for n in range(ncons, len(stream)) if stream[n][0] != "wo"]
    def bfor(item):
        kind, idx = item
        if kind == "V": return buildB(16 + (idx >> 4), bitrev4(idx & 15))
        return buildB(59, idx)
    nb = bfor(todo[0])
    for n, item in enumerate(todo):
        b = nb
        if n + 1 < len(todo): nb = bfor(todo[n + 1])
        e.wait_vm(tickets[ncons])
        if item[0] == "V":
            c = "0" if first_pv else "v[28:31]"; first_pv = False
            I(f"v_mfma_f32_16x16x32_bf16 v[28:31], {vr(slot(ncons))}, {vr(b)}, {c}")
        else:
            c = "0" if first_out else "v[32:35]"; first_out = False
            I(f"v_mfma_f32_16x16x32_bf16 v[32:35], {vr(slot(ncons))}, {vr(b)}, {c}")
        ncons += 1
        issue_next()
    stamp()
    I("v_and_b32 v60, 7, v2")
    I("v_lshl_add_u32 v60, v60, 2, v3")
    I("s_lshl_b32 s7, s9, 5")
    I("v_add_u32 v60, s7, v60")
    I("v_lshlrev_b32 v60, 2, v60")
    I("v_lshrrev_b32 v61, 3, v2")
    I("v_lshl_add_u32 v60, v61, 12, v60")
    lds_store_acc(28, OP)
    I("s_waitcnt lgkmcnt(0)")
    I("s_barrier")
    to = [I(f"ds_read_b32 v{36+jj}, v60 offset:{OP + jj*512}") for jj in range(8)]
    e.wait_lgkm(to[3])
    I("v_add_f32 v36, v36, v37"); I("v_add_f32 v38, v38, v39"); I("v_add_f32 v36, v36, v38")
    e.wait_lgkm(to[7])
    I("v_add_f32 v40, v40, v41"); I("v_add_f32 v42, v42, v43"); I("v_add_f32 v40, v40, v42")
    I("v_add_f32 v36, v36, v40")
    I("v_add_f32_dpp v36, v36, v36 row_ror:8 row_mask:0xf bank_mask:0xf")
    I("v_cvt_pk_bf16_f32 v36, v36, v36")
    nb = buildB(36, 0)
    for t in range(8):
        b = nb
        if t < 7: nb = buildB(36, t + 1)
        e.wait_vm(tickets[ncons])
        I(f"v_mfma_f32_16x16x32_bf16 v[32:35], {vr(slot(ncons))}, {vr(b)}, v[32:35]")
        ncons += 1
    lds_store_acc(32, OUTP)
    I("s_waitcnt lgkmcnt(0)")
    I("s_barrier")
    stamp()
    I("s_cmp_lg_u32 s3, 0")
    I("s_cbranch_scc1 L_wait")
    tr = []
    for half in range(2):
        for rq in range(4):
            tr.append(I(f"ds_read_b128 {vr(64 + 4*(4*half+rq))}, v1 offset:{OUTP + rq*2048 + half*1024}"))
    I("s_lshl_b32 s7, s2, 11")
    for half in range(2):
        e.wait_lgkm(tr[4*half+3])
        a = 64 + 16*half
        for rr in (0, 2):
            I(f"v_pk_add_f32 v[{a+rr}:{a+rr+1}], v[{a+rr}:{a+rr+1}], v[{a+4+rr}:{a+5+rr}]")
            I(f"v_pk_add_f32 v[{a+8+rr}:{a+9+rr}], v[{a+8+rr}:{a+9+rr}], v[{a+12+rr}:{a+13+rr}]")
        for rr in (0, 2):
            I(f"v_pk_add_f32 v[{a+rr}:{a+rr+1}], v[{a+rr}:{a+rr+1}], v[{a+8+rr}:{a+9+rr}]")
        I(f"buffer_store_dwordx4 {vr(a)}, v1, s[68:71], s7 offen offset:{half*1024} sc1")
    I("s_lshl_b32 s7, s4, 2")
    I("v_mov_b32 v60, s7")
    I("v_mov_b32 v61, 1")
    I("v_mov_b32 v36, 0")
    I("s_waitcnt vmcnt(0)")
    I("s_mov_b64 exec, 1")
    I("global_atomic_add v62, v60, v61, s[38:39] sc0")
    I("s_waitcnt vmcnt(0)")
    I(f"ds_write_b32 v36, v62 offset:{FLAG}")
    I("s_mov_b64 exec, -1")
    I("s_waitcnt lgkmcnt(0)")
    e.fence()
    e.label("L_wait")
    I("s_barrier")
    I("v_mov_b32 v36, 0")
    I(f"ds_read_b32 v36, v36 offset:{FLAG}")
    I("v_lshrrev_b32 v60, 3, v0")
    I("v_lshlrev_b32 v60, 11, v60")
    I("v_and_b32 v61, 7, v0")
    I("v_lshl_add_u32 v60, v61, 4, v60")
    I("s_lshl_b32 s7, s4, 16")
    I("s_lshl_b32 s14, s3, 7")
    I("s_add_u32 s7, s7, s14")
    I("s_add_u32 s76, s7, 16384")
    I("s_add_u32 s77, s7, 32768")
    I("s_add_u32 s78, s7, 49152")
    I("s_waitcnt lgkmcnt(0)")
    I("v_readfirstlane_b32 s14, v36")
    stamp()
    I("s_cmp_lg_u32 s14, 31")
    I("s_cbranch_scc1 L_end")
    for st, s in enumerate(("s7", "s76", "s77", "s78")):
        I(f"buffer_load_dwordx4 {vr(64+4*st)}, v60, s[68:71], {s} offen sc1")
    for j in range(2):
        I(f"v_lshlrev_b32 v{40+2*j}, 16, v{52+j}")
        I(f"v_and_b32 v{41+2*j}, 0xffff0000, v{52+j}")
        I(f"v_lshlrev_b32 v{44+2*j}, 16, v{54+j}")
        I(f"v_and_b32 v{45+2*j}, 0xffff0000, v{54+j}")
    for j in range(4):
        I(f"v_add_f32 v{40+j}, v{40+j}, v{44+j}")
    I("v_lshlrev_b32 v61, 3, v61")
    I("s_lshl_b32 s7, s4, 10")
    I("s_lshl_b32 s14, s3, 6")
    I("s_add_u32 s7, s7, s14")
    I("s_waitcnt vmcnt(2)")
    for rr in (0, 2):
        I(f"v_pk_add_f32 v[{64+rr}:{65+rr}], v[{64+rr}:{65+rr}], v[{68+rr}:{69+rr}]")
    I("s_waitcnt vmcnt(0)")
    for rr in (0, 2):
        I(f"v_pk_add_f32 v[{72+rr}:{73+rr}], v[{72+rr}:{73+rr}], v[{76+rr}:{77+rr}]")
    for rr in (0, 2):
        I(f"v_pk_add_f32 v[{64+rr}:{65+rr}], v[{64+rr}:{65+rr}], v[{72+rr}:{73+rr}]")
    for j in range(4):
        I(f"v_add_f32_dpp v{64+j}, v{64+j}, v{64+j} row_ror:8 row_mask:0xf bank_mask:0xf")
    for j in range(4):
        I(f"v_mov_b32 v{68+j}, v{64+j}")
    for j in range(4):
        I(f"v_permlane16_swap_b32 v{64+j}, v{68+j}")
    for j in range(4):
        I(f"v_add_f32 v{64+j}, v{64+j}, v{68+j}")
    for j in range(4):
        I(f"v_mov_b32 v{68+j}, v{64+j}")
    for j in range(4):
        I(f"v_permlane32_swap_b32 v{64+j}, v{68+j}")
    for j in range(4):
        I(f"v_add_f32 v{64+j}, v{64+j}, v{68+j}")
    for j in range(4):
        I(f"v_add_f32 v{64+j}, v{64+j}, v{40+j}")
    I("v_cvt_pk_bf16_f32 v64, v64, v65")
    I("v_cvt_pk_bf16_f32 v65, v66, v67")
    I("s_mov_b64 exec, 0xff")
    I("buffer_store_dwordx2 v[64:65], v61, s[72:75], s7 offen")
    I("s_mov_b64 exec, -1")
    e.fence()
    e.label("L_end")
    if stamps:
        stamp()
        I("s_mov_b32 s70, 0x1000000")
        I("s_lshl_b32 s7, s2, 4")
        I("s_add_u32 s7, s7, s3")
        I("s_lshl_b32 s7, s7, 8")
        I("s_add_u32 s7, s7, 0x100000")
        I("v_lshlrev_b32 v60, 2, v0")
        I("buffer_store_dword v63, v60, s[68:71], s7 offen")
    e.label("L_done")

    ref = open(REF).read()
    head = []
    for line in ref.splitlines():
        if line.startswith("; @launch"):
            head.append(f"; @launch grid=(256,1,1) block=(1024,1,1) lds={LDS_BYTES}")
        elif line.startswith(";"):
            head.append(line)
        else:
            break
    out = "\n".join(head) + "\n"
    out += f""".amdgcn_target "amdgcn-amd-amdhsa--gfx950"
.text
.globl {NAME}
.p2align 8
.type {NAME},@function
{NAME}:
"""
    out += e.text()
    out += f"""s_endpgm
.section .rodata,"a"
.p2align 6
.amdhsa_kernel {NAME}
  .amdhsa_next_free_vgpr 128
  .amdhsa_next_free_sgpr 102
  .amdhsa_accum_offset 128
  .amdhsa_group_segment_fixed_size 0
  .amdhsa_kernarg_size 104
  .amdhsa_user_sgpr_count 2
  .amdhsa_user_sgpr_kernarg_segment_ptr 1
  .amdhsa_system_sgpr_workgroup_id_x 1
  .amdhsa_float_denorm_mode_32 3
.end_amdhsa_kernel
"""
    return out, e

if __name__ == "__main__":
    cfg = json.loads(sys.argv[2]) if len(sys.argv) > 2 else {}
    txt, e = gen(**cfg)
    open(sys.argv[1], "w").write(txt)
    print("lines", len(e.lines), "auto nops", e.auto_nops)
```

```python
import sys, json
from asmgen import Em

NAME = "parallel_sum__mha_block_cached__dense_activation_gelu__decode_kernel"
REF = "parallel_sum__mha_block_cached__dense_activation_gelu__decode.s.ref"

QP   = 0
HP   = 2048
OP   = 4096
ML   = 6144
FLAG = 6208
CNT  = 6212
LDS_BYTES = 6400
WS_ATT = 0
WS_MLP = 512 * 1024
WS_MLPF = 1024 * 1024
WS_STAMP = 2 * 1024 * 1024
WS_SIZE = 0x1000000

def bitrev4(j):
    return ((j & 1) << 3) | ((j & 2) << 1) | ((j & 4) >> 1) | ((j & 8) >> 3)

def gen(D=5, R=44, N1=30, NB=3, budget=44, hdepth=6, stamps=False, prio=True, gran=4, extraB=0, D2=None, dbgtime=False):
    e = Em()
    I = e.I
    RING = 64
    assert RING + 4 * R <= 252
    def slot(n): return RING + 4 * (n % R)
    def hs(n): return 64 + 4 * n
    def vr(a, n=4): return f"v[{a}:{a+n-1}]"
    DP = "row_mask:0xf bank_mask:0xf"

    def rowreduce(op, v):
        I(f"{op}_dpp v{v}, v{v}, v{v} quad_perm:[1,0,3,2] {DP}")
        I(f"{op}_dpp v{v}, v{v}, v{v} quad_perm:[2,3,0,1] {DP}")
        I(f"{op}_dpp v{v}, v{v}, v{v} row_half_mirror {DP}")
        I(f"{op}_dpp v{v}, v{v}, v{v} row_mirror {DP}")
    def allreduce(op, v, t):
        rowreduce(op, v)
        I(f"v_mov_b32 v{t}, v{v}")
        I(f"v_permlane16_swap_b32 v{v}, v{t}")
        I(f"{op} v{v}, v{v}, v{t}")
        I(f"v_mov_b32 v{t}, v{v}")
        I(f"v_permlane32_swap_b32 v{v}, v{t}")
        I(f"{op} v{v}, v{v}, v{t}")
    def bf16r(v):
        I(f"v_cvt_pk_bf16_f32 v{v}, v{v}, v{v}")
        I(f"v_and_b32 v{v}, 0xffff0000, v{v}")
    bsel = [0]
    def buildB(src, lane):
        b = 32 + 4 * bsel[0]
        bsel[0] ^= 1
        for r in range(4):
            I(f"v_and_b32_dpp v{b+r}, v{src}, v{8+r} row_newbcast:{lane} {DP}")
        return b
    def lds_store_acc(acc, base):
        I("s_mov_b64 exec, s[96:97]")
        for r in range(4):
            I(f"ds_write_b32 v7, v{acc+r} offset:{base + r*32}")
        I("s_mov_b64 exec, -1")
    nstamp = [0]
    SV = [255]
    def stamp(k=None):
        if not stamps: return
        if k is None:
            k = nstamp[0]
        nstamp[0] = k + 1
        I("s_memrealtime s[98:99]")
        I("s_waitcnt lgkmcnt(0)")
        I(f"v_writelane_b32 v{SV[0]}, s98, {k}")
    def write_stamps():
        if not stamps: return
        if dbgtime:
            role = 0 if SV[0] == 255 else 1
            sel = [(0, True), (2, False), (3, False), (5, False), (6, False), (6, True)] if role == 0 else [(0, True), (2, False), (7, False), (9, False), (10, False), (11, False)]
            words = [1, 2, 3, 5, 6, 7] if role == 0 else [9, 10, 11, 13, 14, 15]
            for (k, neg), w in zip(sel, words):
                I(f"v_readlane_b32 s98, v{SV[0]}, {k}")
                if neg: I("s_not_b32 s98, s98")
                I("v_mov_b32 v60, s98")
                I(f"v_mov_b32 v61, {w*4}")
                I("s_mov_b64 exec, 1")
                I("global_atomic_umax v61, v60, s[38:39]")
                I("s_mov_b64 exec, -1")
            return
        I("s_getreg_b32 s98, hwreg(HW_REG_XCC_ID)")
        I(f"v_writelane_b32 v{SV[0]}, s98, 15")
        I("s_lshl_b32 s7, s2, 4")
        I("s_add_u32 s7, s7, s3")
        I("s_lshl_b32 s7, s7, 8")
        I(f"s_add_u32 s7, s7, {WS_STAMP}")
        I("v_lshlrev_b32 v60, 2, v0")
        I(f"buffer_store_dword v{SV[0]}, v60, s[68:71], s7 offen")
    def srd(d, p, size):
        I(f"s_mov_b32 s{d}, s{p}"); I(f"s_mov_b32 s{d+1}, s{p+1}"); I(f"s_mov_b32 s{d+2}, {size}"); I(f"s_mov_b32 s{d+3}, 0x20000")
    sreg = [76]
    def news():
        sreg[0] = 76 + (sreg[0] - 76 + 1) % 16
        return sreg[0]

    I("s_cmp_ge_u32 s2, 256")
    I("s_cbranch_scc1 L_done")
    I("s_load_dwordx16 s[16:31], s[0:1], 0")
    I("s_load_dwordx8 s[32:39], s[0:1], 64")
    I("s_load_dwordx2 s[40:41], s[0:1], 96")
    if stamps:
        I("v_mov_b32 v63, 0")
        I("v_mov_b32 v255, 0")
    I("v_lshrrev_b32 v1, 6, v0")
    I("v_and_b32 v0, 63, v0")
    I("v_readfirstlane_b32 s3, v1")
    I("v_lshlrev_b32 v1, 4, v0")
    I("v_and_b32 v2, 15, v0")
    I("v_lshrrev_b32 v3, 4, v0")
    I("s_lshr_b32 s4, s2, 5")
    I("s_and_b32 s5, s2, 31")
    I("s_and_b32 s8, s3, 3")
    I("s_cmp_ge_u32 s3, 4")
    I("s_cbranch_scc1 L_helper")

    if prio: I("s_setprio 2")
    I("s_lshl_b32 s6, s2, 20")
    I(f"s_mul_i32 s7, s8, {gran*1024}")
    I("s_add_u32 s6, s6, s7")
    I("s_waitcnt lgkmcnt(0)")
    srd(44, 18, 1 << 28)
    tickets = {}
    cur = {}
    def issue(n):
        kind, j = ("K", n) if n < 256 else ("V", n - 256)
        off = (j // gran) * gran * 4096 + (j % gran) * 1024
        hi, lo = off & ~4095, off & 4095
        if cur.get("k") != (kind, hi):
            s = news(); cur["k"] = (kind, hi); cur["s"] = s
            I(f"s_add_u32 s{s}, s6, {hi}")
        sr = "s[44:47]" if kind == "K" else "s[48:51]"
        tickets[n] = I(f"buffer_load_dwordx4 {vr(slot(n))}, v1, {sr}, s{cur['s']} offen offset:{lo} nt")
    W = []
    def setup1():
        srd(48, 20, 1 << 28)
        srd(68, 40, WS_SIZE)
        I("v_lshl_add_u32 v7, v3, 5, v2")
        I("v_lshlrev_b32 v7, 2, v7")
        I("s_lshl_b32 s7, s8, 9")
        I("v_add_u32 v7, s7, v7")
        I("v_mov_b32 v60, 0xffff")
        I("v_mov_b32 v61, 0xffff0000")
        for r in range(4):
            I(f"v_cmp_eq_u32 vcc, {2*r}, v2")
            I(f"v_cndmask_b32 v{8+r}, 0, v60, vcc")
            I(f"v_cmp_eq_u32 vcc, {2*r+1}, v2")
            I(f"v_cndmask_b32 v{8+r}, v{8+r}, v61, vcc")
        I("s_mov_b32 s92, 0xcccccccc"); I("s_mov_b32 s93, 0xcccccccc")
        I("s_mov_b32 s94, 0xaaaaaaaa"); I("s_mov_b32 s95, 0xaaaaaaaa")
        I("s_mov_b32 s96, 0x00ff00ff"); I("s_mov_b32 s97, 0x00ff00ff")
        I("v_lshlrev_b32 v4, 5, v2")
        I("v_and_b32 v5, 3, v0")
        I("v_lshlrev_b32 v5, 3, v5")
        I("s_lshl_b32 s7, s8, 3")
        I("v_mov_b32 v6, s7")
        stamp(0)
    W.append((D, None, None, 40, setup1))
    qt = []
    def barA():
        stamp(1)
        I("s_barrier")
        stamp(2)
        for p in range(4):
            for hf in range(2):
                qt.append(I(f"ds_read_b128 {vr(32 + 8*p + 4*hf)}, v4 offset:{QP + p*512 + hf*16}"))
    W.append((N1, None, None, 100, barA))
    def qsum():
        I("s_waitcnt lgkmcnt(0)")
        for c in range(0, 8, 2):
            I(f"v_pk_add_f32 v[{32+c}:{33+c}], v[{32+c}:{33+c}], v[{40+c}:{41+c}]")
            I(f"v_pk_add_f32 v[{48+c}:{49+c}], v[{48+c}:{49+c}], v[{56+c}:{57+c}]")
        for c in range(0, 8, 2):
            I(f"v_pk_add_f32 v[{32+c}:{33+c}], v[{32+c}:{33+c}], v[{48+c}:{49+c}]")
        for r in range(4):
            I(f"v_cvt_pk_bf16_f32 v{12+r}, v{32+2*r}, v{33+2*r}")
    assert not stamps or True
    W.append((N1, None, None, 20, qsum))
    P = 44
    def consK(k):
        def f():
            u, j = k >> 4, k & 15
            sl = slot(k)
            I(f"v_dot2_f32_bf16 v{P+j}, v{sl}, v12, 0")
            for r in range(1, 4):
                I(f"v_dot2_f32_bf16 v{P+j}, v{sl+r}, v{12+r}, v{P+j}")
            def stepA(a):
                I(f"v_add_f32_dpp v{P+a}, v{P+a}, v{P+a} row_ror:8 row_mask:0xf bank_mask:0x3")
                I(f"v_add_f32_dpp v{P+a}, v{P+a+1}, v{P+a+1} row_ror:8 row_mask:0xf bank_mask:0xc")
            def stepB(a):
                I(f"v_add_f32_dpp v{P+a}, v{P+a}, v{P+a} row_half_mirror row_mask:0xf bank_mask:0x5")
                I(f"v_add_f32_dpp v{P+a}, v{P+a+2}, v{P+a+2} row_half_mirror row_mask:0xf bank_mask:0xa")
            def stepC(a):
                I(f"v_add_f32_dpp v{P+a}, v{P+a}, v{P+a} quad_perm:[2,3,0,1] {DP}")
                I(f"v_add_f32_dpp v{P+a+4}, v{P+a+4}, v{P+a+4} quad_perm:[2,3,0,1] {DP}")
                I(f"v_cndmask_b32 v{P+a}, v{P+a}, v{P+a+4}, s[92:93]")
            def stepD(u):
                I(f"v_add_f32_dpp v{P}, v{P}, v{P} quad_perm:[1,0,3,2] {DP}")
                I(f"v_add_f32_dpp v{P+8}, v{P+8}, v{P+8} quad_perm:[1,0,3,2] {DP}")
                I(f"v_cndmask_b32 v{16+u}, v{P}, v{P+8}, s[94:95]")
                bf16r(16 + u)
                I(f"v_mul_f32 v{16+u}, 0x3db504f3, v{16+u}")
                bf16r(16 + u)
                if u == 0: I("v_mov_b32 v60, v16")
                else: I(f"v_max_f32 v60, v60, v{16+u}")
            if j >= 2 and j % 2 == 0: stepA(j - 2)
            if j >= 5 and j % 4 == 1: stepB(j - 5)
            if j == 11: stepC(0)
            if j == 15:
                stepA(14); stepB(12); stepC(8); stepD(u)
        return f
    for k in range(256):
        W.append((0, k, k, 24 if (k & 15) == 15 else 7, consK(k)))
    def lmax():
        stamp(3)
        allreduce("v_max_f32", 60, 61)
    W.append((0, None, None, 20, lmax))
    def lsum(a0):
        def f():
            for a in range(a0, a0 + 8):
                I(f"v_sub_f32 v{P+a}, v{16+a}, v60")
                I(f"v_mul_f32 v{P+a}, 0x3fb8aa3b, v{P+a}")
                I(f"v_exp_f32 v{P+a}, v{P+a}")
        return f
    W.append((0, None, None, 30, lsum(0)))
    W.append((0, None, None, 30, lsum(8)))
    def lsum2():
        for st in (1, 2, 4, 8):
            for a in range(0, 16, 2 * st):
                I(f"v_add_f32 v{P+a}, v{P+a}, v{P+a+st}")
        I(f"v_mov_b32 v61, v{P}")
        allreduce("v_add_f32", 61, 62)
        I("s_mov_b64 exec, 1")
        I(f"ds_write_b64 v6, v[60:61] offset:{ML}")
        I("s_mov_b64 exec, -1")
    W.append((0, None, None, 40, lsum2))
    W.append(("delay", NB))
    def barB():
        I("s_waitcnt lgkmcnt(0)")
        stamp(4)
        I("s_barrier")
        stamp(5)
        I(f"ds_read_b64 v[60:61], v5 offset:{ML}")
        I("s_waitcnt lgkmcnt(0)")
        I("v_mov_b32 v62, v60")
        I(f"v_max_f32_dpp v62, v62, v62 quad_perm:[1,0,3,2] {DP}")
        I(f"v_max_f32_dpp v62, v62, v62 quad_perm:[2,3,0,1] {DP}")
        I("v_sub_f32 v60, v60, v62")
        I("v_mul_f32 v60, 0x3fb8aa3b, v60")
        I("v_exp_f32 v60, v60")
        I("v_mul_f32 v61, v61, v60")
        I(f"v_add_f32_dpp v61, v61, v61 quad_perm:[1,0,3,2] {DP}")
        I(f"v_add_f32_dpp v61, v61, v61 quad_perm:[2,3,0,1] {DP}")
        I("v_rcp_f32 v61, v61")
    W.append((0, None, None, 100, barB))
    def pcalc(a0):
        def f():
            for a in range(a0, a0 + 4):
                I(f"v_sub_f32 v{16+a}, v{16+a}, v62")
                I(f"v_mul_f32 v{16+a}, 0x3fb8aa3b, v{16+a}")
                I(f"v_exp_f32 v{16+a}, v{16+a}")
            for a in range(a0, a0 + 4):
                I(f"v_mul_f32 v{16+a}, v{16+a}, v61")
                I(f"v_cvt_pk_bf16_f32 v{16+a}, v{16+a}, v{16+a}")
        return f
    W.append((0, None, None, 24, pcalc(0)))
    nb = [None]
    def consV(k):
        def f():
            if k == 0:
                nb[0] = buildB(16, bitrev4(0))
            b = nb[0]
            c = "0" if k == 0 else "v[40:43]"
            if k + 1 < 256:
                nb[0] = buildB(16 + ((k + 1) >> 4), bitrev4((k + 1) & 15))
            return b, c
        return f
    vitems = []
    for k in range(256):
        vitems.append((0, 256 + k, 256 + k, 6, ("V", k)))
    W.append(vitems[0]); W.append(vitems[1])
    W.append((0, None, None, 24, pcalc(4)))
    W.append(vitems[2]); W.append(vitems[3])
    W.append((0, None, None, 24, pcalc(8)))
    W.append(vitems[4]); W.append(vitems[5])
    W.append((0, None, None, 24, pcalc(12)))
    W += vitems[6:]

    landed = -1
    consumed = -1
    wi = 0
    NL = 512
    hold_until = 0
    n = 0
    def Dof(n):
        return D
    while wi < len(W) or n < NL:
        if n < NL:
            assert n - R <= consumed, f"ring overflow at step {n}: consumed {consumed}"
            if n >= D:
                e.wait_vm(tickets[n - D]); landed = max(landed, n - D)
            issue(n)
        bud = budget if n < NL else 10**9
        while wi < len(W) and bud > 0:
            it = W[wi]
            if it[0] == "delay":
                hold_until = n + it[1]; wi += 1
                continue
            ms, need, frees, cost, fn = it
            if n < NL and (n < ms or n < hold_until): break
            if need is not None and need > landed:
                if n < NL: break
                pass
            if isinstance(fn, tuple):
                k = fn[1]
                b, c = consV(k)()
                if need > landed:
                    e.wait_vm(tickets[need]); landed = need
                I(f"v_mfma_f32_16x16x32_bf16 v[40:43], {vr(slot(need))}, {vr(b)}, {c}")
            else:
                if need is not None and need > landed:
                    e.wait_vm(tickets[need]); landed = need
                fn()
            if frees is not None: consumed = frees
            bud -= cost
            wi += 1
        n += 1
    stamp(6)
    lds_store_acc(40, OP)
    I("s_waitcnt lgkmcnt(0)")
    I("s_barrier")
    stamp(7)
    write_stamps()
    I("s_endpgm")

    e.fence()
    e.label("L_helper")
    SV[0] = 63
    e.lastw.clear(); e.mfma_c_read.clear(); e.store_data.clear()
    I("v_lshlrev_b32 v60, 4, v2")
    I("v_lshl_add_u32 v4, v3, 13, v60")
    I("v_lshl_add_u32 v6, v3, 10, v60")
    I("v_min_u32 v61, 6, v2")
    I("v_lshlrev_b32 v61, 4, v61")
    I("s_movk_i32 s7, 3584")
    I("v_mad_u32_u24 v5, v3, s7, v61")
    I("v_lshl_add_u32 v14, v2, 2, v3")
    I("s_lshl_b32 s7, s8, 7")
    I("v_add_u32 v61, s7, v14")
    I("v_lshlrev_b32 v61, 1, v61")
    I("s_lshl_b32 s10, s8, 20")
    I("s_lshl_b32 s7, s5, 8")
    I("s_add_u32 s10, s10, s7")
    I("s_lshl_b32 s7, s4, 10")
    I("s_waitcnt lgkmcnt(0)")
    I("s_add_u32 s16, s16, s7")
    I("s_addc_u32 s17, s17, 0")
    stamp(0)
    t_x = I("global_load_dwordx4 v[48:51], v1, s[16:17] nt")
    t_xc0 = I("global_load_ushort v12, v61, s[16:17] nt")
    t_xc1 = I("global_load_ushort v13, v61, s[16:17] offset:128 nt")
    srd(52, 22, 512*4096*2)
    tq = []
    for s in range(32):
        sr = news(); I(f"s_add_u32 s{sr}, s10, {s*4*8192}")
        tq.append(I(f"buffer_load_dwordx4 {vr(hs(s))}, v4, s[52:55], s{sr} offen nt"))
    srd(56, 24, 4096*512*2)
    srd(60, 28, 512*1792*2)
    srd(64, 32, 1792*512*2)
    srd(68, 40, WS_SIZE)
    srd(72, 36, 8192)
    I("v_lshl_add_u32 v7, v3, 5, v2")
    I("v_lshlrev_b32 v7, 2, v7")
    I("s_lshl_b32 s7, s8, 9")
    I("v_add_u32 v7, s7, v7")
    I("v_mov_b32 v60, 0xffff")
    I("v_mov_b32 v61, 0xffff0000")
    for r in range(4):
        I(f"v_cmp_eq_u32 vcc, {2*r}, v2")
        I(f"v_cndmask_b32 v{8+r}, 0, v60, vcc")
        I(f"v_cmp_eq_u32 vcc, {2*r+1}, v2")
        I(f"v_cndmask_b32 v{8+r}, v{8+r}, v61, vcc")
    I("s_mov_b32 s96, 0x00ff00ff"); I("s_mov_b32 s97, 0x00ff00ff")
    I("s_mul_i32 s11, s8, 458752")
    I("s_mul_i32 s7, s5, 112")
    I("s_add_u32 s11, s11, s7")
    I("s_lshl_b32 s7, s8, 8")
    I("s_mul_i32 s12, s5, 57344")
    I("s_add_u32 s12, s12, s7")
    I("s_lshl_b32 s13, s5, 17")
    I("s_add_u32 s13, s13, s7")
    I("v_mov_b32 v60, 0")
    I(f"ds_write_b32 v60, v60 offset:{CNT}")
    e.wait_vm(t_x)
    for j in range(4):
        I(f"v_lshlrev_b32 v{16+2*j}, 16, v{48+j}")
        I(f"v_and_b32 v{17+2*j}, 0xffff0000, v{48+j}")
    I("v_add_f32 v24, v16, v17"); I("v_add_f32 v25, v18, v19"); I("v_add_f32 v26, v20, v21"); I("v_add_f32 v27, v22, v23")
    I("v_add_f32 v24, v24, v25"); I("v_add_f32 v26, v26, v27"); I("v_add_f32 v24, v24, v26")
    allreduce("v_add_f32", 24, 25)
    I("v_mul_f32 v24, 0x3b000000, v24")
    for j in range(8):
        I(f"v_sub_f32 v{16+j}, v{16+j}, v24")
    I("v_mul_f32 v26, v16, v16")
    I("v_mul_f32 v27, v17, v17")
    for j in range(2, 8, 2):
        I(f"v_fmac_f32 v26, v{16+j}, v{16+j}")
        I(f"v_fmac_f32 v27, v{17+j}, v{17+j}")
    I("v_add_f32 v26, v26, v27")
    allreduce("v_add_f32", 26, 25)
    I("v_mul_f32 v26, 0x3b000000, v26")
    bf16r(26)
    I("v_add_f32 v26, 0x3727c5ac, v26")
    bf16r(26)
    I("v_sqrt_f32 v26, v26")
    bf16r(26)
    I("v_rcp_f32 v26, v26")
    bf16r(24)
    e.wait_vm(t_xc1)
    for v in (12, 13):
        I(f"v_lshlrev_b32 v{v}, 16, v{v}")
        I(f"v_sub_f32 v{v}, v{v}, v24")
        bf16r(v)
        I(f"v_mul_f32 v{v}, v{v}, v26")
        I(f"v_cvt_pk_bf16_f32 v{v}, v{v}, v{v}")
    stamp(1)
    nb_ = buildB(12, 0)
    for s in range(32):
        b = nb_
        if s < 31: nb_ = buildB(12 + ((s + 1) >> 4), (s + 1) & 15)
        e.wait_vm(tq[s])
        c = "0" if s == 0 else "v[40:43]"
        I(f"v_mfma_f32_16x16x32_bf16 v[40:43], {vr(hs(s))}, {vr(b)}, {c}")
    lds_store_acc(40, QP)
    I("s_waitcnt lgkmcnt(0)")
    stamp(2)
    I("s_barrier")
    stamp(3)
    I("v_min_u32 v60, 55, v14")
    I("s_mul_i32 s7, s5, 56")
    I("v_add_u32 v60, s7, v60")
    I("v_lshlrev_b32 v60, 1, v60")
    I("global_load_ushort v15, v60, s[30:31] nt")
    I("v_and_b32 v60, 7, v0")
    I("v_bfe_u32 v61, v0, 3, 2")
    I("v_lshl_add_u32 v60, v61, 5, v60")
    I("v_lshlrev_b32 v28, 1, v60")
    I("s_lshl_b32 s7, s8, 8")
    I("v_add_u32 v29, s7, v28")
    for r in range(4):
        I(f"global_load_ushort v{16+r}, v29, s[16:17] offset:{r*16} nt")
    t1 = {}
    def iss_w1(s):
        sr = news(); I(f"s_add_u32 s{sr}, s11, {s*4*3584}")
        t1[s] = I(f"buffer_load_dwordx4 {vr(hs(s))}, v5, s[60:63], s{sr} offen nt")
    for s in range(hdepth): iss_w1(s)
    for s in range(32):
        b = buildB(12 + (s >> 4), s & 15)
        e.wait_vm(t1[s])
        c = "0" if s == 0 else "v[40:43]"
        I(f"v_mfma_f32_16x16x32_bf16 v[40:43], {vr(hs(s))}, {vr(b)}, {c}")
        if s + hdepth < 32: iss_w1(s + hdepth)
    lds_store_acc(40, HP)
    lst = [("w2", t) for t in range(14)] + [("wo", t) for t in range(32)]
    tl = []
    for n_, (kind, t) in enumerate(lst):
        if n_ >= hdepth: e.wait_vm(tl[n_ - hdepth])
        sr = news()
        if kind == "w2":
            I(f"s_add_u32 s{sr}, s12, {t*4096}")
            tl.append(I(f"buffer_load_dwordx4 {vr(hs(32+t))}, v6, s[64:67], s{sr} offen nt"))
        else:
            I(f"s_add_u32 s{sr}, s13, {t*4096}")
            tl.append(I(f"buffer_load_dwordx4 {vr(hs(t))}, v6, s[56:59], s{sr} offen nt"))
    I("v_lshlrev_b32 v30, 2, v14")
    I("v_lshl_add_u32 v31, v3, 3, v2")
    I("v_lshlrev_b32 v31, 4, v31")
    I("s_lshl_b32 s14, s2, 11")
    I("s_lshl_b32 s7, s8, 9")
    I("s_add_u32 s14, s14, s7")
    I("s_waitcnt vmcnt(0) lgkmcnt(0)")
    stamp(4)
    I("s_barrier")
    stamp(5)
    th = [I(f"ds_read_b32 v{48+p}, v30 offset:{HP + p*512}") for p in range(4)]
    I("s_waitcnt lgkmcnt(0)")
    I("v_add_f32 v48, v48, v49"); I("v_add_f32 v50, v50, v51"); I("v_add_f32 v48, v48, v50")
    bf16r(48)
    I("v_lshlrev_b32 v15, 16, v15")
    I("v_add_f32 v48, v48, v15")
    bf16r(48)
    I("v_mul_f32 v49, v48, v48")
    I("v_mul_f32 v49, 0x3d372713, v49")
    I("v_add_f32 v49, 1.0, v49")
    I("v_mul_f32 v49, v49, v48")
    I("v_mul_f32 v49, 0xc0135761, v49")
    I("v_exp_f32 v49, v49")
    I("v_add_f32 v49, 1.0, v49")
    I("v_rcp_f32 v49, v49")
    I("v_mul_f32 v49, v49, v48")
    I("v_cvt_pk_bf16_f32 v49, v49, v49")
    nb_ = buildB(49, 0)
    for t in range(14):
        b = nb_
        if t < 13: nb_ = buildB(49, t + 1)
        c = "0" if t == 0 else "v[44:47]"
        I(f"v_mfma_f32_16x16x32_bf16 v[44:47], {vr(hs(32+t))}, {vr(b)}, {c}")
    I(f"s_add_u32 s7, s14, {WS_MLP}")
    I("s_mov_b64 exec, s[96:97]")
    I("buffer_store_dwordx4 v[44:47], v31, s[68:71], s7 offen sc1")
    I("s_mov_b64 exec, 1")
    I("v_mov_b32 v60, 0")
    I("v_mov_b32 v61, 1")
    I("s_waitcnt vmcnt(0)")
    I(f"ds_add_rtn_u32 v62, v60, v61 offset:{CNT}")
    I("s_waitcnt lgkmcnt(0)")
    I("v_readfirstlane_b32 s7, v62")
    I("s_mov_b64 exec, -1")
    I("s_cmp_lg_u32 s7, 3")
    I("s_cbranch_scc1 L_mlp_done")
    I("s_lshl_b32 s7, s4, 5")
    I("v_mov_b32 v60, s7")
    I("s_mov_b64 exec, 1")
    I("global_atomic_add v62, v60, v61, s[38:39] offset:16 sc0")
    I("s_waitcnt vmcnt(0)")
    I("v_readfirstlane_b32 s7, v62")
    I("s_mov_b64 exec, -1")
    I("s_cmp_lg_u32 s7, 31")
    I("s_cbranch_scc1 L_mlp_done")
    I("v_lshrrev_b32 v60, 5, v0")
    I("v_lshlrev_b32 v60, 11, v60")
    I("v_and_b32 v61, 31, v0")
    I("v_lshl_add_u32 v60, v61, 4, v60")
    I("v_lshlrev_b32 v61, 4, v61")
    I("s_lshl_b32 s15, s4, 16")
    I(f"s_add_u32 s15, s15, {WS_MLP}")
    I("s_lshl_b32 s9, s4, 11")
    I(f"s_add_u32 s9, s9, {WS_MLPF}")
    for cb in range(4):
        for r in range(4):
            I(f"global_load_ushort v{52+r}, v28, s[34:35] offset:{cb*256 + r*16} nt")
        for j in range(16):
            sr = news(); I(f"s_add_u32 s{sr}, s15, {j*4096 + cb*512}")
            I(f"buffer_load_dwordx4 {vr(hs(32+j))}, v60, s[68:71], s{sr} offen sc1")
        I("s_waitcnt vmcnt(0)")
        for st in (1, 2, 4, 8):
            for j in range(0, 16, 2 * st):
                a, bb = hs(32 + j), hs(32 + j + st)
                I(f"v_pk_add_f32 v[{a}:{a+1}], v[{a}:{a+1}], v[{bb}:{bb+1}]")
                I(f"v_pk_add_f32 v[{a+2}:{a+3}], v[{a+2}:{a+3}], v[{bb+2}:{bb+3}]")
        a = hs(32)
        for r in range(4): I(f"v_mov_b32 v{a+4+r}, v{a+r}")
        for r in range(4): I(f"v_permlane32_swap_b32 v{a+r}, v{a+4+r}")
        for r in range(4): I(f"v_add_f32 v{a+r}, v{a+r}, v{a+4+r}")
        for r in range(4): bf16r(a + r)
        for r in range(4):
            I(f"v_lshlrev_b32 v{52+r}, 16, v{52+r}")
            I(f"v_add_f32 v{56+r}, v{a+r}, v{52+r}")
        for r in range(4): bf16r(56 + r)
        I("s_mov_b64 exec, 0xffffffff")
        I(f"buffer_store_dwordx4 v[56:59], v61, s[68:71], s9 offen offset:{cb*512} sc1")
        I("s_mov_b64 exec, -1")
    I("s_waitcnt vmcnt(0)")
    e.fence()
    e.label("L_mlp_done")
    I("v_lshrrev_b32 v26, 5, v0")
    I("v_lshlrev_b32 v26, 11, v26")
    I("v_and_b32 v27, 31, v0")
    I("v_lshl_add_u32 v26, v27, 4, v26")
    I("v_lshlrev_b32 v27, 4, v27")
    I("s_lshl_b32 s15, s4, 16")
    I("s_lshl_b32 s7, s8, 9")
    I("s_add_u32 s15, s15, s7")
    I("s_lshl_b32 s9, s4, 11")
    I("s_add_u32 s9, s9, s7")
    I(f"s_add_u32 s9, s9, {WS_MLPF}")
    for j in range(16):
        I(f"s_add_u32 s{76+j}, s15, {j*4096}")
    I("s_lshl_b32 s7, s4, 5")
    I("v_mov_b32 v24, s7")
    I("v_mov_b32 v25, 1")
    I("v_mov_b32 v23, 0")
    for r in range(4):
        I(f"v_lshlrev_b32 v{16+r}, 16, v{16+r}")
    I("s_lshl_b32 s10, s4, 10")
    stamp(6)
    I("s_barrier")
    stamp(7)
    to = []
    for u in range(2):
        for p in range(4):
            to.append(I(f"ds_read_b32 v{48+4*u+p}, v30 offset:{OP + p*512 + u*256}"))
    e.wait_lgkm(to[3])
    I("v_add_f32 v48, v48, v49"); I("v_add_f32 v50, v50, v51"); I("v_add_f32 v48, v48, v50")
    I("v_cvt_pk_bf16_f32 v48, v48, v48")
    e.wait_lgkm(to[7])
    I("v_add_f32 v52, v52, v53"); I("v_add_f32 v54, v54, v55")
    nb_ = buildB(48, 0)
    I("v_add_f32 v52, v52, v54")
    I("v_cvt_pk_bf16_f32 v49, v52, v52")
    for t in range(32):
        b = nb_
        if t < 31: nb_ = buildB(48 + ((t + 1) >> 4), (t + 1) & 15)
        c = "0" if t == 0 else "v[40:43]"
        I(f"v_mfma_f32_16x16x32_bf16 v[40:43], {vr(hs(t))}, {vr(b)}, {c}")
    I("s_mov_b64 exec, s[96:97]")
    I("buffer_store_dwordx4 v[40:43], v31, s[68:71], s14 offen sc1")
    I("s_mov_b64 exec, -1")
    stamp(8)
    I("s_waitcnt vmcnt(0)")
    I("s_barrier")
    stamp(9)
    I("s_cmp_lg_u32 s8, 0")
    I("s_cbranch_scc1 L_wait")
    I("s_mov_b64 exec, 1")
    I("global_atomic_add v62, v24, v25, s[38:39] sc0")
    I("s_waitcnt vmcnt(0)")
    I(f"ds_write_b32 v23, v62 offset:{FLAG}")
    I("s_mov_b64 exec, -1")
    I("s_waitcnt lgkmcnt(0)")
    e.label("L_wait")
    I("s_barrier")
    I(f"ds_read_b32 v62, v23 offset:{FLAG}")
    I("s_waitcnt lgkmcnt(0)")
    I("v_readfirstlane_b32 s7, v62")
    stamp(10)
    I("s_cmp_lg_u32 s7, 31")
    I("s_cbranch_scc1 L_end")
    tf = []
    for j in range(16):
        tf.append(I(f"buffer_load_dwordx4 {vr(hs(j))}, v26, s[68:71], s{76+j} offen sc1"))
    tm = I("buffer_load_dwordx4 v[44:47], v27, s[68:71], s9 offen sc1")
    for j in range(0, 16, 2):
        e.wait_vm(tf[j + 1])
        a, bb = hs(j), hs(j + 1)
        I(f"v_pk_add_f32 v[{a}:{a+1}], v[{a}:{a+1}], v[{bb}:{bb+1}]")
        I(f"v_pk_add_f32 v[{a+2}:{a+3}], v[{a+2}:{a+3}], v[{bb+2}:{bb+3}]")
    for st in (2, 4, 8):
        for j in range(0, 16, 2 * st):
            a, bb = hs(j), hs(j + st)
            I(f"v_pk_add_f32 v[{a}:{a+1}], v[{a}:{a+1}], v[{bb}:{bb+1}]")
            I(f"v_pk_add_f32 v[{a+2}:{a+3}], v[{a+2}:{a+3}], v[{bb+2}:{bb+3}]")
    a = hs(0)
    for r in range(4): I(f"v_mov_b32 v{a+4+r}, v{a+r}")
    for r in range(4): I(f"v_permlane32_swap_b32 v{a+r}, v{a+4+r}")
    for r in range(4): I(f"v_add_f32 v{a+r}, v{a+r}, v{a+4+r}")
    for r in range(4): bf16r(a + r)
    for r in range(4): I(f"v_add_f32 v{a+r}, v{a+r}, v{16+r}")
    for r in range(4): bf16r(a + r)
    e.wait_vm(tm)
    for r in range(4): I(f"v_add_f32 v{a+r}, v{a+r}, v{44+r}")
    for r in range(4): I(f"v_cvt_pk_bf16_f32 v{a+r}, v{a+r}, v{a+r}")
    I("s_mov_b64 exec, 0xffffffff")
    for r in range(4):
        I(f"buffer_store_short v{a+r}, v29, s[72:75], s10 offen offset:{r*16}")
    I("s_mov_b64 exec, -1")
    e.fence()
    e.label("L_end")
    stamp(11)
    write_stamps()
    e.label("L_done")

    ref = open(REF).read()
    head = []
    for line in ref.splitlines():
        if line.startswith("; @launch"):
            head.append(f"; @launch grid=(256,1,1) block=(512,1,1) lds={LDS_BYTES}")
        elif line.startswith(";"):
            head.append(line)
        else:
            break
    out = "\n".join(head) + "\n"
    out += f""".amdgcn_target "amdgcn-amd-amdhsa--gfx950"
.text
.globl {NAME}
.p2align 8
.type {NAME},@function
{NAME}:
"""
    out += e.text()
    out += f"""s_endpgm
.section .rodata,"a"
.p2align 6
.amdhsa_kernel {NAME}
  .amdhsa_next_free_vgpr 256
  .amdhsa_next_free_sgpr 102
  .amdhsa_accum_offset 256
  .amdhsa_group_segment_fixed_size 0
  .amdhsa_kernarg_size 104
  .amdhsa_user_sgpr_count 2
  .amdhsa_user_sgpr_kernarg_segment_ptr 1
  .amdhsa_system_sgpr_workgroup_id_x 1
  .amdhsa_float_denorm_mode_32 3
.end_amdhsa_kernel
"""
    return out, e

if __name__ == "__main__":
    cfg = json.loads(sys.argv[2]) if len(sys.argv) > 2 else {}
    txt, e = gen(**cfg)
    open(sys.argv[1], "w").write(txt)
    print("lines", len(e.lines), "auto nops", e.auto_nops)
```
